```python
import torch

def _softmax(x, axis=-1):
    return torch.softmax(x, dim=axis)
def _gelu(x):
    return torch.nn.functional.gelu(x, approximate="tanh")
def _silu(x):
    return torch.nn.functional.silu(x)
def _sigmoid(x):
    return torch.sigmoid(x)
def _layernorm(x, axis=-1, eps=1e-5):
    m = x.mean(dim=axis, keepdim=True)
    v = x.var(dim=axis, keepdim=True, unbiased=False)
    return (x - m) / torch.sqrt(v + eps)
def _scatter_add(tgt, idx, src, axis=0):
    return tgt.clone().index_add_(axis, idx, src)
def _segment_sum(src, seg, n):
    out = torch.zeros((n,) + src.shape[1:], dtype=src.dtype)
    return out.index_add_(0, seg, src)
def _pad(x, pw):
    flat = tuple(v for pair in reversed(pw) for v in pair)
    return torch.nn.functional.pad(x, flat)

kernel_name = 'concat_heads__ssm_conv_s4__spectral_gfnet__prompt'

def setup_inputs():

    _w = (lambda a: (lambda t: t.to(torch.bfloat16) if t.is_floating_point() else t)(torch.as_tensor(a)))
    def _A_setup():
        B, L, D, N = 1, 2048, 1024, 128
        A_re = -(lambda _x: torch.exp(torch.as_tensor(_x)))((lambda *s: torch.randn(*s, dtype=torch.bfloat16) * 3.2)(D, N))
        A_im = torch.pi * (lambda *s: torch.randn(*s, dtype=torch.bfloat16) * 0.05)(D, N)
        B_re = (lambda *s: torch.randn(*s, dtype=torch.bfloat16) * 0.1)(D, N)
        B_im = (lambda *s: torch.randn(*s, dtype=torch.bfloat16) * 0.1)(D, N)
        C_re = (lambda *s: torch.randn(*s, dtype=torch.bfloat16) * 0.1)(D, N)
        C_im = (lambda *s: torch.randn(*s, dtype=torch.bfloat16) * 0.1)(D, N)
        log_dt = (lambda *s: torch.randn(*s, dtype=torch.bfloat16) * 0.05)(D) * 0.5 - 4.0
        Dskip = (lambda *s: torch.randn(*s, dtype=torch.bfloat16) * 0.05)(D)
        return {
            "u": _w((lambda *s: torch.randn(*s, dtype=torch.bfloat16) * 0.05)(B, L, D)),
            "A_re": _w(A_re),
            "A_im": _w(A_im),
            "B_re": _w(B_re),
            "B_im": _w(B_im),
            "C_re": _w(C_re),
            "C_im": _w(C_im),
            "log_dt": _w(log_dt),
            "Dskip": _w(Dskip),
        }
    _A_in = _A_setup()

    def _B_setup():
        B, S, D = 1, 2048, 1024
        Df = D // 2 + 1
        return {
            "x": _w((lambda *s: torch.randn(*s, dtype=torch.bfloat16) * 0.05)(B, S, D)),
            "w_r": _w((lambda *s: torch.randn(*s, dtype=torch.bfloat16) * 0.8)(S, Df) * 0.02),
            "w_i": _w((lambda *s: torch.randn(*s, dtype=torch.bfloat16) * 0.8)(S, Df) * 0.02),
        }
    _B_in = _B_setup()

    return {
        "A_u": _A_in["u"],
        "A_A_re": _A_in["A_re"],
        "A_A_im": _A_in["A_im"],
        "A_B_re": _A_in["B_re"],
        "A_B_im": _A_in["B_im"],
        "A_C_re": _A_in["C_re"],
        "A_C_im": _A_in["C_im"],
        "A_log_dt": _A_in["log_dt"],
        "A_Dskip": _A_in["Dskip"],
        "B_x": _B_in["x"],
        "B_w_r": _B_in["w_r"],
        "B_w_i": _B_in["w_i"],
    }

def reference(A_u, A_A_re, A_A_im, A_B_re, A_B_im, A_C_re, A_C_im, A_log_dt, A_Dskip, B_x, B_w_r, B_w_i):
    def _A_ref(u, A_re, A_im, B_re, B_im, C_re, C_im, log_dt, Dskip):
        Bsz, L, D = u.shape
        dt = torch.exp(log_dt)[:, None]
        A = A_re + 1j * A_im
        Bc = B_re + 1j * B_im
        Cc = C_re + 1j * C_im
        logdA = dt * A
        dB = dt * Bc
        l = (lambda x, dt: x.to(dt))(torch.arange(L), A_re.dtype)
        P = torch.exp(logdA[:, :, None] * l[None, None, :])
        K = torch.einsum("dn,dnl,dn->dl", Cc, P, dB).real
        L2 = 2 * L
        Kp = _pad(K, ((0, 0), (0, L)))
        up = (lambda x, *d: x.permute(*d))(u, 0, 2, 1)
        up = _pad(up, ((0, 0), (0, 0), (0, L)))
        Kf = (lambda x, axes=(-2,-1): torch.fft.rfft2(x.float(), dim=axes))(Kp[:, None, :], axes=(-2, -1))
        Uf = (lambda x, axes=(-2,-1): torch.fft.rfft2(x.float(), dim=axes))(up[:, :, None, :], axes=(-2, -1))
        Yf = Uf * Kf[None, :, :, :]
        y = (lambda x, s, axes=(-2,-1): torch.fft.irfft2(x, s=s, dim=axes).to(torch.bfloat16))(Yf, (1, L2), axes=(-2, -1))[:, :, 0, :L]
        y = (lambda x, *d: x.permute(*d))(y, 0, 2, 1) + u * Dskip[None, None, :]
        return y

    def _B_ref(x, w_r, w_i):
        B, S, D = x.shape
        X = (lambda x, axes=(-2,-1): torch.fft.rfft2(x.float(), dim=axes))(x, axes=(-2, -1))
        W = w_r + 1j * w_i
        X = X * W
        y = (lambda x, s, axes=(-2,-1): torch.fft.irfft2(x, s=s, dim=axes).to(torch.bfloat16))(X, (S, D), axes=(-2, -1))
        return y

    a = _A_ref(A_u, A_A_re, A_A_im, A_B_re, A_B_im, A_C_re, A_C_im, A_log_dt, A_Dskip)
    b = _B_ref(B_x, B_w_r, B_w_i)
    return torch.concatenate([a, b], axis=-1)
```

```python
import re
TRANS = ("v_exp_f32","v_log_f32","v_rcp_f32","v_rsq_f32","v_sqrt_f32","v_sin_f32","v_cos_f32")
def regs_of(tok):
    out=set()
    tok=tok.strip()
    for m in re.finditer(r'\b([vsa])\[(\d+):(\d+)\]', tok):
        for i in range(int(m.group(2)), int(m.group(3))+1): out.add((m.group(1), i))
    t2=re.sub(r'\b[vsa]\[\d+:\d+\]','',tok)
    for m in re.finditer(r'\b([vsa])(\d+)\b', t2):
        out.add((m.group(1), int(m.group(2))))
    if re.search(r'\bvcc\b', tok): out.add(('s',106)); out.add(('s',107))
    return out

class Ins:
    def __init__(s, text):
        s.text=text
        t=text.split(';')[0].strip()
        parts=t.split(None,1)
        s.mn=parts[0]
        ops=[]
        if len(parts)>1:
            cur='';depth=0
            for ch in parts[1]:
                if ch=='[':depth+=1
                if ch==']':depth-=1
                if ch==',' and depth==0: ops.append(cur);cur=''
                else: cur+=ch
            ops.append(cur)
        s.ops=[o.strip() for o in ops]
        mn=s.mn
        s.is_mfma=mn.startswith('v_mfma')
        s.is_valu=mn.startswith('v_') and not s.is_mfma
        s.is_trans=mn.replace('_e32','').replace('_e64','') in TRANS
        s.is_vmem=mn.startswith(('buffer_','global_','flat_'))
        s.is_ds=mn.startswith('ds_')
        s.is_store=('store' in mn) or mn.startswith('ds_write') or mn.startswith('ds_add')
        s.w=set(); s.r=set()
        if s.is_mfma:
            s.w=regs_of(s.ops[0]); s.rA=regs_of(s.ops[1]); s.rB=regs_of(s.ops[2]); s.rC=regs_of(s.ops[3])
            s.r=s.rA|s.rB|s.rC
            s.passes = 8 if '32x32x16' in mn else (4 if '16x16x32' in mn else 16)
        elif s.is_valu:
            if mn.startswith('v_cmp'):
                s.w=regs_of(s.ops[0]);
                for o in s.ops[1:]: s.r|=regs_of(o)
            else:
                s.w=regs_of(s.ops[0])
                rest=s.ops[1:]
                if ('_co_' in mn):
                    s.w|=regs_of(s.ops[1]); rest=s.ops[2:]
                for o in rest: s.r|=regs_of(o)
                if mn.startswith(('v_fmac','v_mac')) : s.r|=regs_of(s.ops[0])
                if mn.startswith('v_cndmask') and len(s.ops)==3: s.r|={('s',106),('s',107)}
                if 'permlane' in mn and 'swap' in mn:
                    s.w|=regs_of(s.ops[1]); s.r|=regs_of(s.ops[0])
        elif s.is_vmem or s.is_ds:
            if s.is_store:
                for o in s.ops: s.r|=regs_of(o)
            else:
                s.w=regs_of(s.ops[0])
                for o in s.ops[1:]: s.r|=regs_of(o)
                if 'd16' in mn: s.r|=regs_of(s.ops[0])
        elif mn.startswith('s_'):
            if mn.startswith('s_cmp') or mn.startswith('s_cbranch') or mn in('s_branch','s_waitcnt','s_nop','s_barrier','s_endpgm','s_setprio'):
                for o in s.ops: s.r|=regs_of(o)
            else:
                if s.ops: s.w=regs_of(s.ops[0])
                for o in s.ops[1:]: s.r|=regs_of(o)
        s.states = 1
        if mn=='s_nop': s.states=int(s.ops[0],0)+1

def need(prev, cur):
    n=0
    pw=prev.w
    if prev.is_mfma:
        D=pw
        big={2:5,4:8,8:12,16:20}[prev.passes]
        if cur.is_mfma:
            if D&(cur.rA|cur.rB): n=max(n,big)
            if D&cur.rC:
                if not (cur.rC==D and cur.passes==prev.passes): n=max(n,{2:4,4:6,8:10,16:18}[prev.passes])
            elif D&cur.w: n=max(n,{2:4,4:6,8:10,16:18}[prev.passes])
        else:
            if D&(cur.r|cur.w): n=max(n,big)
        if cur.is_valu and (prev.rC & cur.w): n=max(n,{2:1,4:3,8:7,16:15}[prev.passes])
    if prev.is_valu:
        vw={x for x in pw if x[0] in 'va'}
        sw={x for x in pw if x[0]=='s'}
        if cur.is_mfma and vw&cur.r: n=max(n,2)
        if prev.is_trans and cur.is_valu and not cur.is_trans and vw&cur.r: n=max(n,1)
        if cur.mn.startswith(('v_readlane','v_readfirstlane')) and vw&cur.r: n=max(n,1)
        if 'permlane' in cur.mn and vw&cur.r: n=max(n,2)
        if sw:
            if cur.is_valu and sw&cur.r: n=max(n,2)
            if cur.mn.startswith(('v_readlane','v_writelane')) and sw&cur.r: n=max(n,4)
            if (cur.is_vmem) and sw&cur.r: n=max(n,5)
            if cur.mn.startswith('s_') and sw&cur.r: n=max(n,1)
    if (prev.is_vmem) and prev.is_store and ('x4' in prev.mn or 'x3' in prev.mn):
        if (cur.is_valu or cur.is_mfma) and prev.r & cur.w: n=max(n,2)
    if prev.is_ds and prev.is_store and ('b128' in prev.mn or 'b96' in prev.mn):
        if (cur.is_valu) and prev.r & cur.w: n=max(n,2)
    return n

class Kern:
    def __init__(s, name):
        s.name=name; s.items=[]
        s.maxv=0; s.maxs=0
    def __call__(s, text, *a):
        if a: text=text%a
        for line in text.split('\n'):
            line=line.strip()
            if not line: continue
            if line.endswith(':'):
                s.items.append(('l',line))
            else:
                s.items.append(('i',Ins(line)))
    def label(s,l): s.items.append(('l',l+':'))
    def finalize(s):
        out=[]
        hist=[]
        for kind,it in s.items:
            if kind=='l':
                out.append(it);
                continue
            ins=it
            req=0
            dist=0
            for p in reversed(hist):
                nd=need(p,ins)
                if nd>dist: req=max(req,nd-dist)
                dist+=p.states
                if dist>24: break
            while req>0:
                k=min(req,16)
                nop=Ins('s_nop %d'%(k-1)); out.append('    '+nop.text); hist.append(nop); req-=k
            out.append('    '+ins.text); hist.append(ins)
            for (t,n) in ins.w|ins.r:
                if t=='v': s.maxv=max(s.maxv,n+1)
                if t=='s' and n<106: s.maxs=max(s.maxs,n+1)
        return out

def emit_file(header_lines, kerns, path):
    o=[]
    o+=header_lines
    o.append('.amdgcn_target "amdgcn-amd-amdhsa--gfx950"')
    o.append('.text')
    descs=[]
    for k in kerns:
        body=k.finalize()
        o.append('.globl %s'%k.name)
        o.append('.p2align 8')
        o.append('.type %s,@function'%k.name)
        o.append('%s:'%k.name)
        o+=body
        nv=max(8,(k.maxv+3)//4*4)
        descs.append((k.name,nv))
    o.append('.section .rodata,"a"')
    for name,nv in descs:
        o.append('.p2align 6')
        o.append('.amdhsa_kernel %s'%name)
        o.append('  .amdhsa_next_free_vgpr %d'%nv)
        o.append('  .amdhsa_next_free_sgpr 102')
        o.append('  .amdhsa_accum_offset %d'%nv)
        o.append('  .amdhsa_group_segment_fixed_size 0')
        o.append('  .amdhsa_kernarg_size 120')
        o.append('  .amdhsa_user_sgpr_count 2')
        o.append('  .amdhsa_user_sgpr_kernarg_segment_ptr 1')
        o.append('  .amdhsa_system_sgpr_workgroup_id_x 1')
        o.append('.end_amdhsa_kernel')
    open(path,'w').write('\n'.join(o)+'\n')
```

```python
from fw import *
WS_UT=0
WS_KR=0x400000
WS_YT=0x900000
WS_XC=0xD00000
WS_WT=0x1200000
WS_ZC=0x1700000
WS_ZN=0x1B00000
WS_TAB=0x1C00000
WS_BYTES=268435456
KR_STRIDE=4160
LOG2E=0x3fb8aa3b
INV2PI=0x3e22f983

def srd(k, sd, sbase, nbytes, add=0):
    if add:
        k('s_add_u32 s%d, s%d, 0x%x', sd, sbase, add)
        k('s_addc_u32 s%d, s%d, 0', sd+1, sbase+1)
    else:
        k('s_mov_b32 s%d, s%d', sd, sbase)
        k('s_mov_b32 s%d, s%d', sd+1, sbase+1)
    k('s_mov_b32 s%d, 0x%x', sd+2, nbytes)
    k('s_mov_b32 s%d, 0x00020000', sd+3)

def body_T(k, wg='s2', pfx='T'):
    k('s_load_dwordx2 s[4:5], s[0:1], 0')
    k('s_load_dwordx2 s[6:7], s[0:1], 112')
    k('s_and_b32 s20, %s, 15', wg)
    k('s_lshr_b32 s21, %s, 4', wg)
    k('s_waitcnt lgkmcnt(0)')
    srd(k, 8, 4, 4194304)
    srd(k, 12, 6, 4194304, WS_UT)
    k('v_and_b32 v1, 7, v0')
    k('v_lshrrev_b32 v2, 3, v0')
    k('s_lshl_b32 s22, s21, 6')
    k('s_lshl_b32 s23, s20, 7')
    k('v_add_u32 v3, s22, v2')
    k('v_lshlrev_b32 v3, 11, v3')
    k('v_lshlrev_b32 v4, 4, v1')
    k('v_add_u32 v3, v3, v4')
    k('v_add_u32 v3, s23, v3')
    k('buffer_load_dwordx4 v[8:11], v3, s[8:11], 0 offen')
    k('v_add_u32 v5, 0x10000, v3')
    k('buffer_load_dwordx4 v[12:15], v5, s[8:11], 0 offen')
    k('v_mul_u32_u24 v6, 144, v2')
    k('v_add_u32 v6, v6, v4')
    k('s_waitcnt vmcnt(1)')
    k('ds_write_b128 v6, v[8:11]')
    k('s_waitcnt vmcnt(0)')
    k('ds_write_b128 v6, v[12:15] offset:4608')
    k('s_waitcnt lgkmcnt(0)')
    k('s_barrier')
    k('v_mul_u32_u24 v7, 1152, v1')
    k('v_lshlrev_b32 v16, 1, v2')
    k('v_add_u32 v7, v7, v16')
    for half in range(2):
        for e in range(8):
            k('ds_read_u16 v%d, v7 offset:%d', 32+half*8+e, e*144+half*64)
    k('s_lshl_b32 s24, s20, 6')
    k('v_add_u32 v17, s24, v2')
    k('v_lshlrev_b32 v17, 12, v17')
    k('v_add_u32 v17, v17, v4')
    k('s_lshl_b32 s25, s21, 7')
    k('v_add_u32 v17, s25, v17')
    k('v_add_u32 v18, 0x20000, v17')
    k('s_waitcnt lgkmcnt(0)')
    for i in range(8):
        k('v_lshl_or_b32 v%d, v%d, 16, v%d', 20+i, 33+2*i, 32+2*i)
    k('buffer_store_dwordx4 v[20:23], v17, s[12:15], 0 offen')
    k('buffer_store_dwordx4 v[24:27], v18, s[12:15], 0 offen')

def body_KG(k, wg='s2', pfx='KG'):
    TAB=0; RED=12288;
    k('s_load_dwordx4 s[4:7], s[0:1], 8')
    k('s_load_dwordx4 s[8:11], s[0:1], 24')
    k('s_load_dwordx4 s[12:15], s[0:1], 40')
    k('s_load_dwordx2 s[16:17], s[0:1], 56')
    k('s_load_dwordx2 s[18:19], s[0:1], 112')
    k('s_waitcnt lgkmcnt(0)')
    for i,b in enumerate([4,6,8,10,12,14]):
        srd(k, 24+4*i, b, 262144)
    srd(k, 48, 16, 2048)
    srd(k, 52, 18, 1024*KR_STRIDE, WS_KR)
    k('v_cmp_gt_u32 vcc, 128, v0')
    k('s_and_saveexec_b64 s[20:21], vcc')
    k('s_cbranch_execz %s_p0done', pfx)
    k('s_lshl_b32 s22, %s, 8', wg)
    k('v_lshlrev_b32 v1, 1, v0')
    k('v_add_u32 v1, s22, v1')
    for i in range(6):
        k('buffer_load_ushort v%d, v1, s[%d:%d], 0 offen', 2+i, 24+4*i, 27+4*i)
    k('s_lshl_b32 s23, %s, 1', wg)
    k('v_mov_b32 v8, s23')
    k('buffer_load_ushort v8, v8, s[48:51], 0 offen')
    k('s_waitcnt vmcnt(0)')
    for i in range(7):
        k('v_lshlrev_b32 v%d, 16, v%d', 2+i, 2+i)
    k('s_mov_b32 s56, 0x%x', LOG2E)
    k('s_mov_b32 s57, 0x%x', INV2PI)
    k('v_mul_f32 v8, s56, v8')
    k('v_exp_f32 v8, v8')
    k('v_cvt_pk_bf16_f32 v8, v8, v8')
    k('v_lshlrev_b32 v8, 16, v8')
    k('v_mul_f32 v2, v8, v2')
    k('v_mul_f32 v3, v8, v3')
    k('v_mul_f32 v4, v8, v4')
    k('v_mul_f32 v5, v8, v5')
    k('v_mul_f32 v9, v6, v4')
    k('v_fma_f32 v9, -v7, v5, v9')
    k('v_mul_f32 v10, v6, v5')
    k('v_fma_f32 v10, v7, v4, v10')
    k('v_mul_f32 v2, s56, v2')
    k('v_mul_f32 v3, s57, v3')
    k('v_mul_u32_u24 v11, 96, v0')
    k('v_mov_b32 v16, v2')
    k('v_mov_b32 v17, v3')
    k('v_mov_b32 v19, 0')
    bases=[0,64,128,192,256,384,512,768,1024,1536,2048]
    import struct
    for q,b in enumerate(bases):
        fb=struct.unpack('<I',struct.pack('<f',float(b)))[0]
        k('s_mov_b32 s58, 0x%x', fb)
        k('v_mul_f32 v12, s58, v2')
        k('v_exp_f32 v12, v12')
        k('v_mul_f32 v13, s58, v3')
        k('v_fract_f32 v13, v13')
        k('v_cos_f32 v14, v13')
        k('v_sin_f32 v15, v13')
        k('v_mul_f32 v14, v12, v14')
        k('v_mul_f32 v15, v12, v15')
        if q<10:
            dr=20+2*q; di=21+2*q
            k('v_mul_f32 v%d, v9, v14', dr)
            k('v_fma_f32 v%d, -v10, v15, v%d', dr, dr)
            k('v_mul_f32 v%d, v9, v15', di)
            k('v_fma_f32 v%d, v10, v14, v%d', di, di)
            k('v_xor_b32 v%d, 0x80000000, v%d', di, di)
        else:
            k('v_mul_f32 v18, v9, v14')
            k('v_fma_f32 v18, -v10, v15, v18')
    for i in range(6):
        k('ds_write_b128 v11, v[%d:%d] offset:%d', 16+4*i, 19+4*i, TAB+16*i)
    k.label('%s_p0done'%pfx)
    k('s_mov_b64 exec, s[20:21]')
    k('s_waitcnt lgkmcnt(0)')
    k('s_barrier')
    k('v_and_b32 v1, 63, v0')
    k('v_cvt_f32_u32 v1, v1')
    k('v_lshrrev_b32 v2, 6, v0')
    k('v_mul_u32_u24 v3, 3072, v2')
    for i in range(11):
        k('v_mov_b32 v%d, 0', 48+i)
    k('s_mov_b32 s58, 0')
    k.label('%s_loop'%pfx)
    for i in range(6):
        k('ds_read_b128 v[%d:%d], v3 offset:%d', 16+4*i, 19+4*i, TAB+16*i)
    k('v_add_u32 v3, 96, v3')
    k('s_waitcnt lgkmcnt(5)')
    k('v_mul_f32 v4, v16, v1')
    k('v_exp_f32 v4, v4')
    k('v_mul_f32 v5, v17, v1')
    k('v_fract_f32 v5, v5')
    k('v_cos_f32 v6, v5')
    k('v_sin_f32 v7, v5')
    k('v_add_f32 v58, v58, v18')
    k('v_mul_f32 v6, v4, v6')
    k('v_mul_f32 v7, v4, v7')
    k('s_waitcnt lgkmcnt(0)')
    def rows(qs):
        for q in qs:
            k('v_fmac_f32 v%d, v%d, v6', 48+q, 20+2*q)
            k('v_fmac_f32 v%d, v%d, v7', 48+q, 21+2*q)
    def sq():
        k('v_mul_f32 v8, v7, v7')
        k('v_mul_f32 v7, v6, v7')
        k('v_fma_f32 v6, v6, v6, -v8')
        k('v_add_f32 v7, v7, v7')
    rows([0,1,2,3]); sq(); rows([4,5]); sq(); rows([6,7]); sq(); rows([8,9])
    k('s_add_u32 s58, s58, 1')
    k('s_cmp_lt_u32 s58, 32')
    k('s_cbranch_scc1 %s_loop', pfx)
    k('v_mul_u32_u24 v3, 2816, v2')
    k('v_and_b32 v4, 63, v0')
    k('v_lshlrev_b32 v4, 2, v4')
    k('v_add_u32 v3, v3, v4')
    for i in range(11):
        k('ds_write_b32 v3, v%d offset:%d', 48+i, RED+256*i)
    k('s_waitcnt lgkmcnt(0)')
    k('s_barrier')
    k('v_lshlrev_b32 v3, 2, v0')
    for kk in range(3):
        for w in range(4):
            k('ds_read_b32 v%d, v3 offset:%d', 16+4*kk+w, RED+1024*kk+2816*w)
    k('s_waitcnt lgkmcnt(0)')
    for kk in range(3):
        b=16+4*kk
        k('v_add_f32 v%d, v%d, v%d', b, b, b+1)
        k('v_add_f32 v%d, v%d, v%d', b+2, b+2, b+3)
        k('v_add_f32 v%d, v%d, v%d', b, b, b+2)
    k('s_barrier')
    for kk in range(3):
        k('ds_write_b32 v3, v%d offset:%d', 16+4*kk, TAB+1024*kk)
    k('s_waitcnt lgkmcnt(0)')
    k('s_barrier')
    k('s_mul_i32 s59, %s, %d', wg, KR_STRIDE)
    for kk in range(9):
        k('v_add_u32 v4, %d, v0', 256*kk)
        k('v_sub_u32 v5, 2047, v4')
        k('v_cvt_f32_i32 v6, v5')
        k('v_cvt_pk_bf16_f32 v6, v6, v6')
        k('v_and_b32 v6, 0xffff, v6')
        k('v_subrev_u32 v6, 17024, v6')
        k('v_cmp_gt_i32 vcc, 256, v5')
        k('v_cndmask_b32 v6, v6, v5, vcc')
        k('v_cmp_gt_i32 vcc, 0, v5')
        k('v_cndmask_b32 v6, v6, 0, vcc' if False else 'v_cndmask_b32 v6, v6, v61, vcc' if False else 'v_max_i32 v6, 0, v6')
        k('v_lshlrev_b32 v6, 2, v6')
        k('ds_read_b32 v%d, v6 offset:%d', 16+kk, TAB)
    k('s_waitcnt lgkmcnt(0)')
    for kk in range(9):
        k('v_add_u32 v4, %d, v0', 256*kk)
        k('v_cvt_pk_bf16_f32 v6, v%d, v%d', 16+kk, 16+kk)
        k('v_cmp_gt_u32 vcc, 2048, v4')
        k('v_cndmask_b32 v6, 0, v6, vcc')
        k('v_lshlrev_b32 v5, 1, v4')
        k('v_add_u32 v5, s59, v5')
        if kk==8:
            k('v_cmp_gt_u32 vcc, 2080, v4')
            k('s_and_saveexec_b64 s[20:21], vcc')
        k('buffer_store_short v6, v5, s[52:55], 0 offen')
        if kk==8:
            k('s_mov_b64 exec, s[20:21]')

def body_CV(k, wg='s2', pfx='CV'):
    LW=10496; KOFF=0; UOFF=4160+2048
    k('s_load_dwordx2 s[6:7], s[0:1], 112')
    k('v_lshrrev_b32 v2, 6, v0')
    k('v_and_b32 v1, 63, v0')
    k('s_waitcnt lgkmcnt(0)')
    srd(k, 8, 6, 1024*KR_STRIDE, WS_KR)
    srd(k, 12, 6, 4194304, WS_UT)
    srd(k, 16, 6, 4194304, WS_YT)
    k('v_readfirstlane_b32 s20, v2')
    k('s_lshl_b32 s21, %s, 2', wg)
    k('s_add_u32 s21, s21, s20')
    k('s_mul_i32 s22, s21, %d', KR_STRIDE)
    k('s_lshl_b32 s23, s21, 12')
    k('s_mul_i32 s24, s20, %d', LW)
    k('v_lshlrev_b32 v3, 4, v1')
    for i in range(4):
        k('buffer_load_dwordx4 v[%d:%d], v3, s[8:11], s22 offen offset:%d', 16+4*i, 19+4*i, 1024*i)
    for i in range(4):
        k('buffer_load_dwordx4 v[%d:%d], v3, s[12:15], s23 offen offset:%d', 32+4*i, 35+4*i, 1024*i)
    k('v_cmp_gt_u32 vcc, 4, v1')
    k('s_and_saveexec_b64 s[26:27], vcc')
    k('v_add_u32 v5, 4096, v3')
    k('buffer_load_dwordx4 v[48:51], v5, s[8:11], s22 offen')
    k('s_mov_b64 exec, s[26:27]')
    k('v_add_u32 v4, s24, v3')
    for i in range(4): k('v_mov_b32 v%d, 0', 52+i)
    k('ds_write_b128 v4, v[52:55] offset:%d', 4160)
    k('ds_write_b128 v4, v[52:55] offset:%d', 4160+1024)
    k('s_waitcnt vmcnt(0)')
    for i in range(4):
        k('ds_write_b128 v4, v[%d:%d] offset:%d', 16+4*i, 19+4*i, KOFF+1024*i)
    for i in range(4):
        k('ds_write_b128 v4, v[%d:%d] offset:%d', 32+4*i, 35+4*i, UOFF+1024*i)
    k('s_and_saveexec_b64 s[26:27], vcc')
    k('ds_write_b128 v4, v[48:51] offset:%d', KOFF+4096)
    k('s_mov_b64 exec, s[26:27]')
    k('v_and_b32 v5, 31, v1')
    k('v_lshrrev_b32 v6, 5, v1')
    k('v_sub_u32 v7, 31, v5')
    k('v_lshl_add_u32 v7, v6, 3, v7')
    k('v_lshlrev_b32 v7, 1, v7')
    k('v_add_u32 v7, s24, v7')
    k('v_lshlrev_b32 v8, 6, v5')
    k('v_lshl_add_u32 v8, v6, 4, v8')
    k('v_add_u32 v8, s24, v8')
    k('v_add_u32 v8, %d, v8', UOFF-64*31)
    for i in range(32): k('v_mov_b32 v%d, 0', 64+i)
    k('s_waitcnt lgkmcnt(0)')
    its=[(dl,kk) for dl in range(32) for kk in range(2)]
    def issue(i):
        dl,kk=its[i]; b=16+16*(i%3)
        c0=32*dl-16*kk; c1=32*(dl+32)-16*kk
        k('ds_read_b128 v[%d:%d], v7 offset:%d', b, b+3, 2*(2016-c0))
        k('ds_read_b128 v[%d:%d], v7 offset:%d', b+4, b+7, 2*(2016-c1))
        ob=64*(31-dl)+32*kk
        k('ds_read_b128 v[%d:%d], v8 offset:%d', b+8, b+11, ob)
        k('ds_read_b128 v[%d:%d], v8 offset:%d', b+12, b+15, ob+2048)
    issue(0); issue(1)
    n=len(its)
    for i in range(n):
        if i+2<n:
            issue(i+2); k('s_waitcnt lgkmcnt(8)')
        elif i+1<n: k('s_waitcnt lgkmcnt(4)')
        else: k('s_waitcnt lgkmcnt(0)')
        b=16+16*(i%3)
        k('v_mfma_f32_32x32x16_bf16 v[64:79], v[%d:%d], v[%d:%d], v[64:79]', b,b+3,b+8,b+11)
        k('v_mfma_f32_32x32x16_bf16 v[80:95], v[%d:%d], v[%d:%d], v[80:95]', b,b+3,b+12,b+15)
        k('v_mfma_f32_32x32x16_bf16 v[80:95], v[%d:%d], v[%d:%d], v[80:95]', b+4,b+7,b+8,b+11)
    k('v_lshlrev_b32 v9, 6, v5')
    k('v_lshl_add_u32 v9, v6, 3, v9')
    for t in range(2):
        for g in range(4):
            r=64+16*t+4*g
            k('v_cvt_pk_bf16_f32 v%d, v%d, v%d', 16+2*(4*t+g), r, r+1)
            k('v_cvt_pk_bf16_f32 v%d, v%d, v%d', 17+2*(4*t+g), r+2, r+3)
    for t in range(2):
        for g in range(4):
            q=16+2*(4*t+g)
            k('buffer_store_dwordx2 v[%d:%d], v9, s[16:19], s23 offen offset:%d', q, q+1, 2048*t+16*g)

def body_EP(k, wg='s2', pfx='EP'):
    k('s_load_dwordx2 s[4:5], s[0:1], 0')
    k('s_load_dwordx2 s[6:7], s[0:1], 112')
    k('s_load_dwordx2 s[28:29], s[0:1], 64')
    k('s_load_dwordx2 s[30:31], s[0:1], 96')
    k('s_and_b32 s20, %s, 15', wg)
    k('s_lshr_b32 s21, %s, 4', wg)
    k('s_waitcnt lgkmcnt(0)')
    srd(k, 8, 4, 4194304)
    srd(k, 12, 6, 4194304, WS_YT)
    srd(k, 32, 28, 2048)
    srd(k, 36, 30, 8388608)
    k('v_and_b32 v1, 7, v0')
    k('v_lshrrev_b32 v2, 3, v0')
    k('s_lshl_b32 s22, s20, 6')
    k('s_lshl_b32 s23, s21, 7')
    k('v_add_u32 v3, s22, v2')
    k('v_lshlrev_b32 v3, 12, v3')
    k('v_lshlrev_b32 v4, 4, v1')
    k('v_add_u32 v3, v3, v4')
    k('v_add_u32 v3, s23, v3')
    k('buffer_load_dwordx4 v[8:11], v3, s[12:15], 0 offen')
    k('v_add_u32 v5, 0x20000, v3')
    k('buffer_load_dwordx4 v[12:15], v5, s[12:15], 0 offen')
    k('s_lshl_b32 s24, s21, 6')
    k('s_lshl_b32 s25, s20, 7')
    k('v_add_u32 v30, s24, v2')
    k('v_lshlrev_b32 v31, 11, v30')
    k('v_add_u32 v31, v31, v4')
    k('v_add_u32 v31, s25, v31')
    k('buffer_load_dwordx4 v[32:35], v31, s[8:11], 0 offen')
    k('v_add_u32 v36, 0x10000, v31')
    k('buffer_load_dwordx4 v[40:43], v36, s[8:11], 0 offen')
    k('v_add_u32 v37, s25, v4')
    k('buffer_load_dwordx4 v[44:47], v37, s[32:35], 0 offen')
    k('v_mul_u32_u24 v6, 144, v2')
    k('v_add_u32 v6, v6, v4')
    k('s_waitcnt vmcnt(4)')
    k('ds_write_b128 v6, v[8:11]')
    k('s_waitcnt vmcnt(3)')
    k('ds_write_b128 v6, v[12:15] offset:4608')
    k('s_waitcnt lgkmcnt(0)')
    k('s_barrier')
    k('v_mul_u32_u24 v7, 1152, v1')
    k('v_lshlrev_b32 v16, 1, v2')
    k('v_add_u32 v7, v7, v16')
    for half in range(2):
        for e in range(8):
            k('ds_read_u16 v%d, v7 offset:%d', 48+half*8+e, e*144+half*64)
    k('s_waitcnt vmcnt(0) lgkmcnt(0)')
    for half in range(2):
        ub=32+8*half
        for e in range(8):
            y=48+half*8+e
            k('v_lshlrev_b32 v%d, 16, v%d', y, y)
            if e%2==0:
                k('v_lshlrev_b32 v64, 16, v%d', ub+e//2)
                k('v_lshlrev_b32 v65, 16, v%d', 44+e//2)
            else:
                k('v_and_b32 v64, 0xffff0000, v%d', ub+e//2)
                k('v_and_b32 v65, 0xffff0000, v%d', 44+e//2)
            k('v_mul_f32 v64, v64, v65')
            k('v_cvt_pk_bf16_f32 v64, v64, v64')
            k('v_lshlrev_b32 v64, 16, v64')
            k('v_add_f32 v%d, v%d, v64', y, y)
        for p in range(4):
            y=48+half*8+2*p
            k('v_cvt_pk_bf16_f32 v%d, v%d, v%d', 68+4*half+p, y, y+1)
    k('v_lshlrev_b32 v17, 12, v30')
    k('v_add_u32 v17, v17, v4')
    k('v_add_u32 v17, s25, v17')
    k('v_add_u32 v18, 0x20000, v17')
    k('buffer_store_dwordx4 v[68:71], v17, s[36:39], 0 offen')
    k('buffer_store_dwordx4 v[72:75], v18, s[36:39], 0 offen')

def body_DBG(k, off, nbytes, wg='s2'):
    k('s_load_dwordx2 s[6:7], s[0:1], 112')
    k('s_load_dwordx2 s[30:31], s[0:1], 96')
    k('s_waitcnt lgkmcnt(0)')
    srd(k, 12, 6, nbytes, off)
    srd(k, 36, 30, min(nbytes,8388608))
    k('s_lshl_b32 s20, %s, 12', wg)
    k('v_lshlrev_b32 v1, 4, v0')
    k('v_add_u32 v1, s20, v1')
    k('buffer_load_dwordx4 v[4:7], v1, s[12:15], 0 offen')
    k('s_waitcnt vmcnt(0)')
    k('buffer_store_dwordx4 v[4:7], v1, s[36:39], 0 offen')
```

```python
from partA import *
import struct
def f2u(x): return struct.unpack('<I',struct.pack('<f',float(x)))[0]

def angle(k, dst, vA, vH, c0, c1, N, tmp):
    if c1!=0:
        k('v_mul_u32_u24 v%d, %d, v%d', tmp, c1, vH)
        k('v_add_u32 v%d, %d, v%d', tmp, c0, tmp)
        k('v_mul_u32_u24 v%d, v%d, v%d', tmp, vA, tmp)
    else:
        k('v_mul_u32_u24 v%d, %d, v%d', tmp, c0, vA)
    k('v_and_b32 v%d, %d, v%d', tmp, N-1, tmp)
    k('v_cvt_f32_u32 v%d, v%d', tmp, tmp)
    k('v_mul_f32 v%d, 0x%x, v%d', dst, f2u(1.0/N), tmp)

def trig(k, dst, src, fn, neg=False):
    k('v_%s_f32 v%d, v%d', fn, dst, src)
    if neg: k('v_xor_b32 v%d, 0x80000000, v%d', dst, dst)

def const_operand(k, dst, vA, vH, N, elems, t0):
    for p in range(4):
        for s in range(2):
            c0,c1,fn,neg=elems[2*p+s]
            angle(k, t0+s, vA, vH, c0, c1, N, t0+2)
            trig(k, t0+s, t0+s, fn, neg)
        k('v_cvt_pk_bf16_f32 v%d, v%d, v%d', dst+p, t0, t0+1)

def perm_k(ks):
    return [(16*ks+8*(j>>2)+(j&3), 4) for j in range(8)]

def cmul_tw(k, r, i, tc, ti, t):
    k('v_mul_f32 v%d, v%d, v%d', t, i, ti)
    k('v_mul_f32 v%d, v%d, v%d', i, i, tc)
    k('v_fmac_f32 v%d, v%d, v%d', i, r, ti)
    k('v_fma_f32 v%d, v%d, v%d, -v%d', r, r, tc, t)

def body_B1(k, wg='s2', pfx='B1'):
    k('s_load_dwordx2 s[4:5], s[0:1], 72')
    k('s_load_dwordx2 s[6:7], s[0:1], 112')
    k('s_and_b32 s20, %s, 63', wg)
    k('s_lshr_b32 s21, %s, 6', wg)
    k('v_and_b32 v1, 31, v0')
    k('v_bfe_u32 v2, v0, 5, 1')
    k('v_lshrrev_b32 v3, 6, v0')
    k('s_waitcnt lgkmcnt(0)')
    srd(k, 8, 4, 4194304)
    srd(k, 12, 6, 513*8192, WS_XC)
    k('v_readfirstlane_b32 s22, v3')
    for kk in range(2):
        const_operand(k, 16+4*kk, 1, 2, 32, [(16*kk+j,8,'cos',False) for j in range(8)], 4)
        const_operand(k, 24+4*kk, 1, 2, 32, [(16*kk+j,8,'sin',True) for j in range(8)], 4)
    for ks in range(2):
        const_operand(k, 32+4*ks, 1, 2, 32, [(c0,c1,'cos',False) for c0,c1 in perm_k(ks)], 4)
        const_operand(k, 40+4*ks, 1, 2, 32, [(c0,c1,'sin',True) for c0,c1 in perm_k(ks)], 4)
        const_operand(k, 48+4*ks, 1, 2, 32, [(c0,c1,'sin',False) for c0,c1 in perm_k(ks)], 4)
    for r in range(16):
        angle(k, 4, 1, 2, 8*(r>>2)+(r&3), 4, 1024, 6)
        trig(k, 64+r, 4, 'cos'); trig(k, 80+r, 4, 'sin', True)
    k('v_lshlrev_b32 v4, 9, v2')
    k('v_lshl_add_u32 v4, v1, 1, v4')
    k('v_mul_u32_u24 v5, 68, v1')
    k('v_mul_u32_u24 v6, %d, v2', 4*32*68)
    k('v_add_u32 v5, v5, v6')
    for r in range(4):
        k('s_lshl_b32 s23, s21, 4')
        k('s_lshl_b32 s24, s22, 2')
        k('s_add_u32 s23, s23, s24')
        k('s_add_u32 s23, s23, %d', r)
        k('s_lshl_b32 s23, s23, 6')
        k('s_add_u32 s23, s23, s20')
        k('s_lshl_b32 s23, s23, 11')
        for kk in range(2):
            for j in range(8):
                k('buffer_load_ushort v%d, v4, s[8:11], s23 offen offset:%d', 96+8*kk+j, 64*(16*kk+j))
        k('s_waitcnt vmcnt(0)')
        for p in range(8):
            k('v_lshl_or_b32 v%d, v%d, 16, v%d', 112+p, 97+2*p, 96+2*p)
        k('v_mfma_f32_32x32x16_bf16 v[128:143], v[112:115], v[16:19], 0')
        k('v_mfma_f32_32x32x16_bf16 v[144:159], v[112:115], v[24:27], 0')
        k('v_mfma_f32_32x32x16_bf16 v[128:143], v[116:119], v[20:23], v[128:143]')
        k('v_mfma_f32_32x32x16_bf16 v[144:159], v[116:119], v[28:31], v[144:159]')
        for e in range(16):
            cmul_tw(k, 128+e, 144+e, 64+e, 80+e, 7)
        for p in range(8):
            k('v_cvt_pk_bf16_f32 v%d, v%d, v%d', 96+p, 128+2*p, 129+2*p)
            k('v_cvt_pk_bf16_f32 v%d, v%d, v%d', 104+p, 144+2*p, 145+2*p)
        k('v_mfma_f32_32x32x16_bf16 v[160:175], v[32:35], v[96:99], 0')
        k('v_mfma_f32_32x32x16_bf16 v[176:191], v[40:43], v[96:99], 0')
        k('v_mfma_f32_32x32x16_bf16 v[160:175], v[36:39], v[100:103], v[160:175]')
        k('v_mfma_f32_32x32x16_bf16 v[176:191], v[44:47], v[100:103], v[176:191]')
        k('v_mfma_f32_32x32x16_bf16 v[160:175], v[48:51], v[104:107], v[160:175]')
        k('v_mfma_f32_32x32x16_bf16 v[176:191], v[32:35], v[104:107], v[176:191]')
        k('v_mfma_f32_32x32x16_bf16 v[160:175], v[52:55], v[108:111], v[160:175]')
        k('v_mfma_f32_32x32x16_bf16 v[176:191], v[36:39], v[108:111], v[176:191]')
        k('s_lshl_b32 s24, s22, 4')
        k('v_add_u32 v7, s24, v5')
        for e in range(9):
            k('v_cvt_pk_bf16_f32 v%d, v%d, v%d', 112+e, 160+e, 176+e)
        for e in range(8):
            f2=8*(e>>2)+(e&3)
            k('ds_write_b32 v7, v%d offset:%d', 112+e, f2*32*68+4*r)
        k('v_cmp_eq_u32 vcc, 0, v0' if False else 'v_and_b32 v8, 63, v0')
        k('v_cmp_eq_u32 vcc, 0, v8')
        k('s_and_saveexec_b64 s[26:27], vcc')
        k('ds_write_b32 v7, v120 offset:%d', 512*68+4*r)
        k('s_mov_b64 exec, s[26:27]')
    k('s_waitcnt lgkmcnt(0)')
    k('s_barrier')
    k('s_lshl_b32 s23, s20, 7')
    k('s_lshl_b32 s24, s21, 6')
    k('s_add_u32 s23, s23, s24')
    for i in range(9):
        k('v_add_u32 v4, %d, v0', 256*i)
        k('v_lshrrev_b32 v5, 2, v4')
        k('v_and_b32 v6, 3, v4')
        k('v_mul_u32_u24 v7, 68, v5')
        k('v_lshl_add_u32 v7, v6, 4, v7')
        k('ds_read_b128 v[%d:%d], v7', 96+4*i, 99+4*i)
        k('v_lshlrev_b32 v%d, 13, v5', 132+i)
        k('v_lshl_add_u32 v%d, v6, 4, v%d', 132+i, 132+i)
    k('s_waitcnt lgkmcnt(0)')
    for i in range(9):
        k('buffer_store_dwordx4 v[%d:%d], v%d, s[12:15], s23 offen', 96+4*i, 99+4*i, 132+i)

def body_WT(k, wg='s2', pfx='WT'):
    k('s_load_dwordx4 s[4:7], s[0:1], 80')
    k('s_load_dwordx2 s[28:29], s[0:1], 112')
    k('s_and_b32 s20, %s, 31', wg)
    k('s_lshr_b32 s21, %s, 5', wg)
    k('v_and_b32 v1, 63, v0')
    k('v_lshrrev_b32 v2, 6, v0')
    k('s_waitcnt lgkmcnt(0)')
    srd(k, 8, 4, 2048*513*2)
    srd(k, 12, 6, 2048*513*2)
    srd(k, 16, 28, 513*8192, WS_WT)
    k('s_lshl_b32 s22, s20, 6')
    k('v_lshl_add_u32 v3, v2, 4, s22')
    k('v_mul_u32_u24 v3, 513, v3')
    k('s_lshl_b32 s23, s21, 6')
    k('v_add_u32 v3, s23, v3')
    k('v_add_u32 v3, v3, v1')
    k('v_lshlrev_b32 v3, 1, v3')
    for i in range(16):
        k('buffer_load_ushort v%d, v3, s[8:11], 0 offen offset:%d', 16+i, 1026*i) if 1026*i<4096 else None
    for i in range(16):
        pass
    k('v_add_u32 v4, 4104, v3')
    k('v_add_u32 v5, 8208, v3')
    k('v_add_u32 v6, 12312, v3')
    for i in range(4,16):
        k('buffer_load_ushort v%d, v%d, s[8:11], 0 offen offset:%d', 16+i, 3+i//4, 1026*(i%4))
    for i in range(16):
        k('buffer_load_ushort v%d, v%d, s[12:15], 0 offen offset:%d', 32+i, 3+i//4, 1026*(i%4))
    k('v_mul_u32_u24 v7, 65, v1')
    k('v_lshl_add_u32 v7, v2, 4, v7')
    k('v_lshlrev_b32 v7, 2, v7')
    k('s_waitcnt vmcnt(0)')
    for i in range(16):
        k('v_lshl_or_b32 v%d, v%d, 16, v%d', 16+i, 32+i, 16+i)
        k('ds_write_b32 v7, v%d offset:%d', 16+i, 4*i)
    k('s_waitcnt lgkmcnt(0)')
    k('s_barrier')
    k('v_and_b32 v1, 15, v0')
    k('v_lshrrev_b32 v2, 4, v0')
    k('v_mul_u32_u24 v7, 65, v2')
    k('v_lshl_add_u32 v7, v1, 2, v7')
    k('v_lshlrev_b32 v7, 2, v7')
    for i in range(4):
        k('ds_read_b128 v[%d:%d], v7 offset:%d', 16+4*i, 19+4*i, 16*65*4*i)
    k('v_add_u32 v3, s23, v2')
    k('v_lshlrev_b32 v3, 13, v3')
    k('v_lshl_add_u32 v3, v1, 4, v3')
    k('s_lshl_b32 s24, s22, 2')
    k('s_waitcnt lgkmcnt(0)')
    for i in range(4):
        k('v_add_u32 v4, %d, v3', 16*8192*i)
        k('buffer_store_dwordx4 v[%d:%d], v4, s[16:19], s24 offen', 16+4*i, 19+4*i)

def body_B2(k, wg='s2', pfx='B2'):
    k('s_load_dwordx2 s[6:7], s[0:1], 112')
    k('v_and_b32 v1, 31, v0')
    k('v_bfe_u32 v2, v0, 5, 1')
    k('v_lshrrev_b32 v3, 6, v0')
    k('s_waitcnt lgkmcnt(0)')
    srd(k, 8, 6, 513*8192, WS_XC)
    srd(k, 12, 6, 513*8192, WS_WT)
    srd(k, 16, 6, 4194304, WS_ZC)
    srd(k, 32, 6, 8192, WS_ZN)
    k('v_readfirstlane_b32 s22, v3')
    k('s_and_b32 s20, %s, 31', wg)
    k('s_lshr_b32 s21, %s, 5', wg)
    k('s_lshl_b32 s23, s21, 3')
    k('s_add_u32 s23, s23, s22')
    k('s_lshl_b32 s23, s23, 5')
    k('s_add_u32 s23, s23, s20')
    k('s_cmp_gt_u32 s23, 512')
    k('s_cbranch_scc1 %s_skip', pfx)
    k('s_lshl_b32 s24, s23, 13')
    k('s_mov_b32 s25, 0x%x', f2u(2.0/(2048*1024)))
    k('s_and_b32 s26, s23, 511')
    k('s_cmp_eq_u32 s26, 0')
    k('s_cselect_b32 s25, 0x%x, s25', f2u(1.0/(2048*1024)))
    k('v_lshlrev_b32 v4, 7, v1')
    k('v_lshl_add_u32 v4, v2, 4, v4')
    for mt in range(2):
        for kk in range(4):
            k('buffer_load_dwordx4 v[%d:%d], v4, s[8:11], s24 offen offset:%d', 16+16*mt+4*kk, 19+16*mt+4*kk, 4096*mt+32*kk) if mt==0 else None
    k('v_add_u32 v5, 4096, v4')
    for kk in range(4):
        k('buffer_load_dwordx4 v[%d:%d], v5, s[8:11], s24 offen offset:%d', 32+4*kk, 35+4*kk, 32*kk)
    k('v_lshlrev_b32 v6, 2, v1')
    k('v_lshl_add_u32 v6, v2, 9, v6')
    k('v_add_u32 v7, 4096, v6')
    for mt in range(2):
        for r in range(16):
            k('buffer_load_dword v%d, v%d, s[12:15], s24 offen offset:%d', 192+16*mt+r, 6+mt, 128*(8*(r>>2)+(r&3)))
    for kk in range(4):
        el_re=[]; el_im=[]
        for j in range(8):
            c0=8*kk+(j>>1)
            if j&1==0: el_re.append((c0,4,'cos',False)); el_im.append((c0,4,'sin',True))
            else: el_re.append((c0,4,'sin',False)); el_im.append((c0,4,'cos',False))
        const_operand(k, 48+4*kk, 1, 2, 32, el_re, 8)
        const_operand(k, 64+4*kk, 1, 2, 32, el_im, 8)
    k('s_waitcnt vmcnt(32)')
    for mt in range(2):
        for kk in range(4):
            c_re='0' if kk==0 else 'v[%d:%d]'%(80+16*mt,95+16*mt)
            c_im='0' if kk==0 else 'v[%d:%d]'%(112+16*mt,127+16*mt)
            a=16+16*mt+4*kk
            k('v_mfma_f32_32x32x16_bf16 v[%d:%d], v[%d:%d], v[%d:%d], %s', 80+16*mt,95+16*mt,a,a+3,48+4*kk,51+4*kk,c_re)
            k('v_mfma_f32_32x32x16_bf16 v[%d:%d], v[%d:%d], v[%d:%d], %s', 112+16*mt,127+16*mt,a,a+3,64+4*kk,67+4*kk,c_im)
    for mt in range(2):
        for r in range(16):
            angle(k, 8, 1, 2, 32*mt+8*(r>>2)+(r&3), 4, 2048, 10)
            trig(k, 9, 8, 'cos'); trig(k, 10, 8, 'sin', True)
            cmul_tw(k, 80+16*mt+r, 112+16*mt+r, 9, 10, 11)
    for p in range(16):
        k('v_cvt_pk_bf16_f32 v%d, v%d, v%d', 16+p, 80+2*p, 81+2*p)
        k('v_cvt_pk_bf16_f32 v%d, v%d, v%d', 32+p, 112+2*p, 113+2*p)
    k('v_add_u32 v12, 32, v1')
    for mt2 in range(2):
        vA = 1 if mt2==0 else 12
        for ks in range(4):
            pk=perm_k(ks)
            const_operand(k, 48, vA, 2, 64, [(c0,c1,'cos',False) for c0,c1 in pk], 8)
            const_operand(k, 52, vA, 2, 64, [(c0,c1,'sin',True) for c0,c1 in pk], 8)
            const_operand(k, 56, vA, 2, 64, [(c0,c1,'sin',False) for c0,c1 in pk], 8)
            R='v[%d:%d]'%(80+16*mt2,95+16*mt2); I='v[%d:%d]'%(112+16*mt2,127+16*mt2)
            pr=16+4*ks; pi=32+4*ks
            k('v_mfma_f32_32x32x16_bf16 %s, v[48:51], v[%d:%d], %s', R, pr,pr+3, '0' if ks==0 else R)
            k('v_mfma_f32_32x32x16_bf16 %s, v[52:55], v[%d:%d], %s', I, pr,pr+3, '0' if ks==0 else I)
            k('v_mfma_f32_32x32x16_bf16 %s, v[56:59], v[%d:%d], %s', R, pi,pi+3, R)
            k('v_mfma_f32_32x32x16_bf16 %s, v[48:51], v[%d:%d], %s', I, pi,pi+3, I)
    k('s_waitcnt vmcnt(0)')
    for e in range(32):
        k('v_lshlrev_b32 v9, 16, v%d', 192+e)
        k('v_and_b32 v10, 0xffff0000, v%d', 192+e)
        k('v_mul_f32 v9, s25, v9')
        k('v_mul_f32 v10, s25, v10')
        cmul_tw(k, 80+e, 112+e, 9, 10, 11)
    for p in range(16):
        k('v_cvt_pk_bf16_f32 v%d, v%d, v%d', 16+p, 80+2*p, 81+2*p)
        k('v_cvt_pk_bf16_f32 v%d, v%d, v%d', 32+p, 112+2*p, 113+2*p)
    for nt in range(2):
        vA = 1 if nt==0 else 12
        for ks in range(4):
            pk=perm_k(ks)
            const_operand(k, 48, vA, 2, 64, [(c0,c1,'cos',False) for c0,c1 in pk], 8)
            const_operand(k, 52, vA, 2, 64, [(c0,c1,'sin',False) for c0,c1 in pk], 8)
            const_operand(k, 56, vA, 2, 64, [(c0,c1,'sin',True) for c0,c1 in pk], 8)
            R='v[%d:%d]'%(80+16*nt,95+16*nt); I='v[%d:%d]'%(112+16*nt,127+16*nt)
            dr=16+4*ks; di=32+4*ks
            k('v_mfma_f32_32x32x16_bf16 %s, v[%d:%d], v[48:51], %s', R, dr,dr+3, '0' if ks==0 else R)
            k('v_mfma_f32_32x32x16_bf16 %s, v[%d:%d], v[52:55], %s', I, dr,dr+3, '0' if ks==0 else I)
            k('v_mfma_f32_32x32x16_bf16 %s, v[%d:%d], v[56:59], %s', R, di,di+3, R)
            k('v_mfma_f32_32x32x16_bf16 %s, v[%d:%d], v[48:51], %s', I, di,di+3, I)
    for nt in range(2):
        vA = 1 if nt==0 else 12
        for r in range(16):
            angle(k, 8, vA, 2, 8*(r>>2)+(r&3), 4, 2048, 10)
            trig(k, 9, 8, 'cos'); trig(k, 10, 8, 'sin')
            cmul_tw(k, 80+16*nt+r, 112+16*nt+r, 9, 10, 11)
    for p in range(16):
        k('v_cvt_pk_bf16_f32 v%d, v%d, v%d', 16+p, 80+2*p, 81+2*p)
        k('v_cvt_pk_bf16_f32 v%d, v%d, v%d', 32+p, 112+2*p, 113+2*p)
    for ks in range(2):
        pk=perm_k(ks)
        const_operand(k, 48+12*ks, 1, 2, 32, [(c0,c1,'cos',False) for c0,c1 in pk], 8)
        const_operand(k, 52+12*ks, 1, 2, 32, [(c0,c1,'sin',False) for c0,c1 in pk], 8)
        const_operand(k, 56+12*ks, 1, 2, 32, [(c0,c1,'sin',True) for c0,c1 in pk], 8)
    for nt in range(2):
        R='v[%d:%d]'%(80+16*nt,95+16*nt); I='v[%d:%d]'%(112+16*nt,127+16*nt)
        for ks in range(2):
            pr=16+8*nt+4*ks; pi=32+8*nt+4*ks; c=48+12*ks
            k('v_mfma_f32_32x32x16_bf16 %s, v[%d:%d], v[%d:%d], %s', R, c,c+3, pr,pr+3, '0' if ks==0 else R)
            k('v_mfma_f32_32x32x16_bf16 %s, v[%d:%d], v[%d:%d], %s', I, c+4,c+7, pr,pr+3, '0' if ks==0 else I)
            k('v_mfma_f32_32x32x16_bf16 %s, v[%d:%d], v[%d:%d], %s', R, c+8,c+11, pi,pi+3, R)
            k('v_mfma_f32_32x32x16_bf16 %s, v[%d:%d], v[%d:%d], %s', I, c,c+3, pi,pi+3, I)
    k('s_cmp_eq_u32 s23, 512')
    k('s_cbranch_scc1 %s_nyq', pfx)
    k('v_lshl_add_u32 v4, v2, 8, v1')
    k('v_mul_u32_u24 v4, 36, v4')
    k('s_lshl_b32 s26, s22, 2')
    k('v_add_u32 v4, s26, v4')
    k('v_add_u32 v5, %d, v4', 36*1024)
    for nt in range(2):
        for r in range(16):
            k('v_cvt_pk_bf16_f32 v%d, v%d, v%d', 16+16*nt+r, 80+16*nt+r, 112+16*nt+r)
    for nt in range(2):
        for r in range(16):
            s1=8*(r>>2)+(r&3)
            off=36*(64*s1+32*nt)
            if off<36*1024: k('ds_write_b32 v4, v%d offset:%d', 16+16*nt+r, off)
            else: k('ds_write_b32 v5, v%d offset:%d', 16+16*nt+r, off-36*1024)
    k('s_branch %s_skip', pfx)
    k.label('%s_nyq'%pfx)
    k('v_lshl_add_u32 v4, v2, 8, v1')
    k('v_lshlrev_b32 v4, 2, v4')
    k('v_add_u32 v5, 4096, v4')
    for nt in range(2):
        for r in range(16):
            s1=8*(r>>2)+(r&3)
            off=4*(64*s1+32*nt)
            if off<4096: k('buffer_store_dword v%d, v4, s[32:35], 0 offen offset:%d', 80+16*nt+r, off)
            else: k('buffer_store_dword v%d, v5, s[32:35], 0 offen offset:%d', 80+16*nt+r, off-4096)
    k.label('%s_skip'%pfx)
    k('s_waitcnt lgkmcnt(0)')
    k('s_barrier')
    k('s_cmp_eq_u32 %s, 64', wg)
    k('s_cbranch_scc1 %s_done', pfx)
    k('s_lshl_b32 s26, s20, 6')
    k('s_lshl_b32 s27, s21, 5')
    k('s_add_u32 s26, s26, s27')
    k('v_lshrrev_b32 v5, 1, v0')
    k('v_and_b32 v6, 1, v0')
    k('v_mul_u32_u24 v7, 36, v5')
    k('v_lshl_add_u32 v7, v6, 4, v7')
    k('v_lshlrev_b32 v8, 11, v5')
    k('v_lshl_add_u32 v8, v6, 4, v8')
    for i in range(8):
        k('ds_read_b128 v[%d:%d], v7 offset:%d', 16+4*i, 19+4*i, 36*256*i)
    k('s_waitcnt lgkmcnt(0)')
    for i in range(8):
        k('v_add_u32 v9, %d, v8', 2048*256*i)
        k('buffer_store_dwordx4 v[%d:%d], v9, s[16:19], s26 offen', 16+4*i, 19+4*i)
    k.label('%s_done'%pfx)

def body_B3(k, wg='s2', pfx='B3', rows=2):
    k('s_load_dwordx2 s[6:7], s[0:1], 112')
    k('s_load_dwordx2 s[30:31], s[0:1], 96')
    k('v_and_b32 v1, 31, v0')
    k('v_bfe_u32 v2, v0, 5, 1')
    k('v_lshrrev_b32 v3, 6, v0')
    k('s_waitcnt lgkmcnt(0)')
    srd(k, 8, 6, 4194304, WS_ZC)
    srd(k, 12, 6, 8192, WS_ZN)
    srd(k, 36, 30, 8388608)
    k('v_readfirstlane_b32 s22, v3')
    for kk in range(2):
        el_re=[]; el_im=[]
        for j in range(8):
            c0=8*kk+(j>>1)
            if j&1==0: el_re.append((c0,4,'cos',False)); el_im.append((c0,4,'sin',False))
            else: el_re.append((c0,4,'sin',True)); el_im.append((c0,4,'cos',False))
        const_operand(k, 16+4*kk, 1, 2, 32, el_re, 4)
        const_operand(k, 24+4*kk, 1, 2, 32, el_im, 4)
    for ks in range(2):
        pk=perm_k(ks)
        const_operand(k, 32+4*ks, 1, 2, 32, [(c0,c1,'cos',False) for c0,c1 in pk], 4)
        const_operand(k, 40+4*ks, 1, 2, 32, [(c0,c1,'sin',True) for c0,c1 in pk], 4)
    for r in range(16):
        angle(k, 4, 1, 2, 8*(r>>2)+(r&3), 4, 1024, 6)
        trig(k, 64+r, 4, 'cos'); trig(k, 80+r, 4, 'sin')
    k('v_lshlrev_b32 v4, 6, v1')
    k('v_lshl_add_u32 v4, v2, 4, v4')
    k('v_lshlrev_b32 v5, 31, v1')
    k('v_lshlrev_b32 v6, 8, v2')
    k('v_lshl_add_u32 v6, v1, 1, v6')
    k('v_add_u32 v6, 2048, v6')
    for r in range(rows):
        k('s_lshl_b32 s23, %s, 2', wg)
        k('s_add_u32 s23, s23, s22')
        k('s_mul_i32 s23, s23, %d', rows)
        k('s_add_u32 s23, s23, %d', r)
        k('s_lshl_b32 s24, s23, 11')
        k('s_lshl_b32 s25, s23, 2')
        k('s_lshl_b32 s26, s23, 12')
        k('buffer_load_dwordx4 v[96:99], v4, s[8:11], s24 offen')
        k('buffer_load_dwordx4 v[100:103], v4, s[8:11], s24 offen offset:32')
        k('v_mov_b32 v7, 0')
        k('buffer_load_dword v7, v7, s[12:15], s25 offen')
        k('s_waitcnt vmcnt(1)')
        k('v_mfma_f32_32x32x16_bf16 v[128:143], v[96:99], v[16:19], 0')
        k('v_mfma_f32_32x32x16_bf16 v[144:159], v[96:99], v[24:27], 0')
        k('v_mfma_f32_32x32x16_bf16 v[128:143], v[100:103], v[20:23], v[128:143]')
        k('v_mfma_f32_32x32x16_bf16 v[144:159], v[100:103], v[28:31], v[144:159]')
        for e in range(16):
            cmul_tw(k, 128+e, 144+e, 64+e, 80+e, 8)
        for p in range(8):
            k('v_cvt_pk_bf16_f32 v%d, v%d, v%d', 96+p, 128+2*p, 129+2*p)
            k('v_cvt_pk_bf16_f32 v%d, v%d, v%d', 104+p, 144+2*p, 145+2*p)
        k('s_waitcnt vmcnt(0)')
        k('v_xor_b32 v7, v7, v5')
        for e in range(16): k('v_mov_b32 v%d, v7', 160+e)
        k('v_mfma_f32_32x32x16_bf16 v[160:175], v[32:35], v[96:99], v[160:175]')
        k('v_mfma_f32_32x32x16_bf16 v[160:175], v[36:39], v[100:103], v[160:175]')
        k('v_mfma_f32_32x32x16_bf16 v[160:175], v[40:43], v[104:107], v[160:175]')
        k('v_mfma_f32_32x32x16_bf16 v[160:175], v[44:47], v[108:111], v[160:175]')
        for p in range(8):
            k('v_cvt_pk_bf16_f32 v%d, v%d, v%d', 112+p, 160+2*p, 161+2*p)
        for p in range(8):
            r0=2*p; d1=8*(r0>>2)+(r0&3)
            k('buffer_store_short v%d, v6, s[36:39], s26 offen offset:%d', 112+p, 64*d1)
            k('buffer_store_short_d16_hi v%d, v6, s[36:39], s26 offen offset:%d', 112+p, 64*(d1+1))
```

```python
import sys
from partB import *
def mk(name, body, nwg, *a):
    k=Kern(name)
    k('s_cmp_ge_u32 s2, %d', nwg)
    k('s_cbranch_scc1 %s_end', name)
    body(k, *a)
    k('s_waitcnt vmcnt(0) lgkmcnt(0)')
    k.label(name+'_end')
    k('s_endpgm')
    return k
mode=sys.argv[1]
hdr=[]
ks=[]
def add(name, body, nwg, lds, *a, blk=256):
    hdr.append('; @launch kernel=%s grid=(%d,1,1) block=(%d,1,1) lds=%d'%(name,nwg,blk,lds))
    ks.append(mk(name,body,nwg,*a))
if mode=='full':
    add('t_kernel', body_T, 512, 9216)
    add('kg_kernel', body_KG, 1024, 24576)
    add('cv_kernel', body_CV, 256, 41984)
    add('ep_kernel', body_EP, 512, 9216)
add('b1_kernel', body_B1, 128, 34884)
if mode=='xc': add('dbg_kernel', body_DBG, 1026, 0, WS_XC, 513*8192)
add('wt_kernel', body_WT, 288, 16640)
if mode=='wt': add('dbg_kernel', body_DBG, 1026, 0, WS_WT, 513*8192)
if mode in('zc','full','b'):
    add('b2_kernel', body_B2, 65, 73728, blk=512)
if mode=='zc': add('dbg_kernel', body_DBG, 1026, 0, WS_ZC, 4194304+8192)
if mode in('full','b'): add('b3_kernel', body_B3, 256, 0)
emit_file(hdr, ks, sys.argv[2])
```

```python
from partB import *
def body_AF2(k, wg='s2', pfx='AF'):
    PT=0; PSTR=528; MP=12288; RED=16384; KD=28672; UZ=33280; UOFF=UZ+2560
    k('s_load_dwordx4 s[4:7], s[0:1], 8')
    k('s_load_dwordx4 s[8:11], s[0:1], 24')
    k('s_load_dwordx4 s[12:15], s[0:1], 40')
    k('s_load_dwordx2 s[16:17], s[0:1], 56')
    k('s_load_dwordx2 s[18:19], s[0:1], 112')
    k('v_lshrrev_b32 v2, 6, v0')
    k('s_waitcnt lgkmcnt(0)')
    for i,b in enumerate([4,6,8,10,12,14]):
        srd(k, 24+4*i, b, 262144)
    srd(k, 48, 16, 2048)
    srd(k, 52, 18, 4194304, WS_UT)
    srd(k, 60, 18, 4194304, WS_YT)
    k('v_readfirstlane_b32 s64, v2')
    k('s_lshl_b32 s65, %s, 12', wg)
    k('v_lshlrev_b32 v3, 4, v0')
    k('buffer_load_dwordx4 v[100:103], v3, s[52:55], s65 offen')
    k('v_cmp_gt_u32 vcc, 128, v0')
    k('s_and_saveexec_b64 s[20:21], vcc')
    k('s_cbranch_execz %s_p0done', pfx)
    k('s_lshl_b32 s22, %s, 8', wg)
    k('v_lshlrev_b32 v1, 1, v0')
    k('v_add_u32 v1, s22, v1')
    for i in range(6):
        k('buffer_load_ushort v%d, v1, s[%d:%d], 0 offen', 2+i, 24+4*i, 27+4*i)
    k('s_lshl_b32 s23, %s, 1', wg)
    k('v_mov_b32 v8, s23')
    k('buffer_load_ushort v8, v8, s[48:51], 0 offen')
    k('s_waitcnt vmcnt(0)')
    for i in range(7):
        k('v_lshlrev_b32 v%d, 16, v%d', 2+i, 2+i)
    k('s_mov_b32 s56, 0x%x', LOG2E)
    k('s_mov_b32 s57, 0x%x', INV2PI)
    k('v_mul_f32 v8, s56, v8')
    k('v_exp_f32 v8, v8')
    k('v_cvt_pk_bf16_f32 v8, v8, v8')
    k('v_lshlrev_b32 v8, 16, v8')
    k('v_mul_f32 v2, v8, v2')
    k('v_mul_f32 v3, v8, v3')
    k('v_mul_f32 v4, v8, v4')
    k('v_mul_f32 v5, v8, v5')
    k('v_mul_f32 v10, v6, v4')
    k('v_fma_f32 v10, -v7, v5, v10')
    k('v_mul_f32 v11, v6, v5')
    k('v_fma_f32 v11, v7, v4, v11')
    k('v_mul_f32 v2, s56, v2')
    k('v_mul_f32 v3, s57, v3')
    k('v_lshlrev_b32 v12, 3, v0')
    k('ds_write_b64 v12, v[2:3] offset:%d', MP)
    k('v_mul_f32 v4, 0x42000000, v2')
    k('v_mul_f32 v5, 0x42000000, v3')
    k('v_exp_f32 v4, v4')
    k('v_fract_f32 v5, v5')
    k('v_cos_f32 v6, v5')
    k('v_sin_f32 v7, v5')
    k('v_mul_f32 v6, v4, v6')
    k('v_mul_f32 v7, v4, v7')
    k('v_lshlrev_b32 v12, 2, v0')
    def store_row(r):
        k('v_xor_b32 v13, 0x80000000, v11')
        k('v_cvt_pk_bf16_f32 v13, v10, v13')
        k('ds_write_b32 v12, v13 offset:%d', PT+PSTR*r)
    def mulz():
        k('v_mul_f32 v14, v11, v7')
        k('v_mul_f32 v15, v10, v7')
        k('v_fma_f32 v10, v10, v6, -v14')
        k('v_fma_f32 v11, v11, v6, v15')
    def sqz():
        k('v_mul_f32 v14, v7, v7')
        k('v_mul_f32 v15, v6, v7')
        k('v_fma_f32 v6, v6, v6, -v14')
        k('v_add_f32 v7, v15, v15')
    r=0
    for reg,nrows in enumerate([8,4,4,4]):
        for i in range(nrows):
            store_row(r); r+=1
            mulz()
        if reg<3: sqz()
    store_row(20)
    k.label('%s_p0done'%pfx)
    k('s_mov_b64 exec, s[20:21]')
    k('v_lshrrev_b32 v6, 2, v0')
    k('v_mul_u32_u24 v6, 80, v6')
    k('v_and_b32 v7, 3, v0')
    k('v_lshl_add_u32 v6, v7, 4, v6')
    for i in range(4): k('v_mov_b32 v%d, 0', 104+i)
    k('v_lshlrev_b32 v3, 4, v0')
    k('v_cmp_gt_u32 vcc, 160, v0')
    k('s_and_saveexec_b64 s[20:21], vcc')
    k('ds_write_b128 v3, v[104:107] offset:%d', UZ)
    k('s_mov_b64 exec, s[20:21]')
    k('s_waitcnt vmcnt(0)')
    k('ds_write_b128 v6, v[100:103] offset:%d', UOFF)
    k('s_waitcnt lgkmcnt(0)')
    k('s_barrier')
    k('v_and_b32 v5, 31, v0')
    k('v_bfe_u32 v6, v0, 5, 1')
    k('v_cvt_f32_u32 v1, v5')
    k('v_lshlrev_b32 v3, 5, v6')
    k('s_lshl_b32 s66, s64, 8')
    k('v_add_u32 v3, s66, v3')
    k('v_min_u32 v4, 20, v5')
    k('v_mul_u32_u24 v4, %d, v4', PSTR)
    k('v_lshl_add_u32 v4, v6, 4, v4')
    k('s_lshl_b32 s66, s64, 7')
    k('v_add_u32 v4, s66, v4')
    ACC=64
    def ld(ks):
        S=16+12*(ks%2)
        k('ds_read_b128 v[%d:%d], v3 offset:%d', S, S+3, MP+64*ks)
        k('ds_read_b128 v[%d:%d], v3 offset:%d', S+4, S+7, MP+64*ks+16)
        k('ds_read_b128 v[%d:%d], v4 offset:%d', S+8, S+11, PT+32*ks)
    ld(0); ld(1)
    for ks in range(4):
        S=16+12*(ks%2)
        k('s_waitcnt lgkmcnt(%d)', 3 if ks<3 else 0)
        for m in range(4):
            p=S+2*m
            k('v_mul_f32 v%d, v%d, v1', 48+m, p)
            k('v_mul_f32 v%d, v%d, v1', 52+m, p+1)
        for m in range(4):
            k('v_exp_f32 v%d, v%d', 48+m, 48+m)
            k('v_fract_f32 v%d, v%d', 52+m, 52+m)
        for m in range(4):
            k('v_cos_f32 v%d, v%d', 40+2*m, 52+m)
            k('v_sin_f32 v%d, v%d', 41+2*m, 52+m)
        for m in range(4):
            k('v_mul_f32 v%d, v%d, v%d', 40+2*m, 48+m, 40+2*m)
            k('v_mul_f32 v%d, v%d, v%d', 41+2*m, 48+m, 41+2*m)
        for reg in range(4):
            B=56+4*(reg%2)
            for m in range(4):
                k('v_cvt_pk_bf16_f32 v%d, v%d, v%d', B+m, 40+2*m, 41+2*m)
            if reg<3:
                for m in range(4):
                    e=40+2*m
                    k('v_pk_mul_f32 v[%d:%d], v[%d:%d], v[%d:%d] op_sel:[0,0] op_sel_hi:[1,0]', 48+2*m,49+2*m,e,e+1,e,e+1)
            a=ACC+16*reg
            k('v_mfma_f32_32x32x16_bf16 v[%d:%d], v[%d:%d], v[%d:%d], %s', a,a+15,S+8,S+11,B,B+3,'0' if ks==0 else 'v[%d:%d]'%(a,a+15))
            if reg<3:
                for m in range(4):
                    e=40+2*m
                    k('v_fma_f32 v%d, -v%d, v%d, v%d', e, e+1, e+1, 48+2*m)
                    k('v_add_f32 v%d, v%d, v%d', e+1, 49+2*m, 49+2*m)
        if ks+2<4: ld(ks+2)
    k('v_lshlrev_b32 v7, 2, v5')
    k('v_lshl_add_u32 v7, v6, 9, v7')
    k('s_mul_i32 s66, s64, 2688')
    k('v_add_u32 v7, s66, v7')
    for i in range(4):
        k('ds_write_b32 v7, v%d offset:%d', ACC+i, RED+128*i)
    k('v_cmp_eq_u32 vcc, 1, v6')
    for i in range(4):
        k('v_cndmask_b32 v%d, v%d, v%d, vcc', 16+i, ACC+16+4+i, ACC+32+4+i)
    for i in range(4):
        k('v_cndmask_b32 v%d, v%d, v%d, vcc', 20+i, ACC+48+8+i, ACC+8+i)
    for i in range(4):
        k('ds_write_b32 v7, v%d offset:%d', 16+i, RED+128*(8+i))
    k('ds_write_b32 v7, v20 offset:%d', RED+128*16)
    k('v_cmp_eq_u32 vcc, 0, v6')
    k('s_and_saveexec_b64 s[20:21], vcc')
    for i in range(1,4):
        k('ds_write_b32 v7, v%d offset:%d', 20+i, RED+128*(16+i))
    k('s_mov_b64 exec, s[20:21]')
    k('s_waitcnt lgkmcnt(0)')
    k('s_barrier')
    k('v_lshlrev_b32 v3, 2, v0')
    for kk in range(3):
        for w in range(4):
            k('ds_read_b32 v%d, v3 offset:%d', 16+4*kk+w, RED+1024*kk+2688*w)
    k('s_waitcnt lgkmcnt(0)')
    for kk in range(3):
        b=16+4*kk
        k('v_add_f32 v%d, v%d, v%d', b, b, b+1)
        k('v_add_f32 v%d, v%d, v%d', b+2, b+2, b+3)
        k('v_add_f32 v%d, v%d, v%d', b, b, b+2)
    for kk in range(3):
        k('ds_write_b32 v3, v%d offset:%d', 16+4*kk, KD+1024*kk)
    k('s_waitcnt lgkmcnt(0)')
    k('s_barrier')
    def gather(cbase_reg, dst):
        for e in range(16):
            k('v_sub_u32 v5, %d, v%d', 2047-e, cbase_reg)
            k('v_cvt_f32_i32 v6, v5')
            k('v_cvt_pk_bf16_f32 v6, v6, v6')
            k('v_and_b32 v6, 0xffff, v6')
            k('v_subrev_u32 v6, 17024, v6')
            k('v_cmp_gt_i32 vcc, 256, v5')
            k('v_cndmask_b32 v6, v6, v5, vcc')
            k('v_max_i32 v6, 0, v6')
            k('v_lshlrev_b32 v6, 2, v6')
            k('ds_read_b32 v%d, v6 offset:%d', dst+e, KD)
    k('v_lshlrev_b32 v4, 3, v0')
    gather(4, 16)
    k('s_waitcnt lgkmcnt(0)')
    for e in range(8,16):
        k('v_cmp_gt_u32 vcc, %d, v4', 2048-e)
        k('v_cndmask_b32 v%d, 0, v%d, vcc', 16+e, 16+e)
    for p in range(8):
        k('v_cvt_pk_bf16_f32 v%d, v%d, v%d', 32+p, 16+2*p, 17+2*p)
    k('s_barrier')
    k('v_lshlrev_b32 v3, 4, v0')
    for q in range(8):
        W=32; T=64+4*q
        if q%2==0:
            if (q//2)%2==0: src=W+q//2
            else:
                for t in range(4): k('v_mov_b32 v%d, v%d', T+t, W+q//2+t)
                src=T
        else:
            for t in range(4): k('v_alignbit_b32 v%d, v%d, v%d, 16', T+t, W+(q+1)//2+t, W+(q-1)//2+t)
            src=T
        k('ds_write_b128 v3, v[%d:%d] offset:%d', src, src+3, 4160*q)
    for i in range(4): k('v_mov_b32 v%d, 0', 104+i)
    k('v_cmp_gt_u32 vcc, 4, v0')
    k('s_and_saveexec_b64 s[20:21], vcc')
    for q in range(8):
        k('ds_write_b128 v3, v[104:107] offset:%d', 4160*q+4096)
    k('s_mov_b64 exec, s[20:21]')
    k('v_and_b32 v5, 31, v0')
    k('v_bfe_u32 v6, v0, 5, 1')
    k('v_and_b32 v7, 7, v5')
    k('v_sub_u32 v7, 7, v7')
    k('v_mul_u32_u24 v7, 4160, v7')
    k('v_lshrrev_b32 v8, 3, v5')
    k('v_sub_u32 v8, v6, v8')
    k('v_lshl_add_u32 v7, v8, 4, v7')
    k('v_add_u32 v7, 48, v7')
    k('s_mul_i32 s66, s64, 512')
    k('v_subrev_u32 v7, s66, v7')
    k('v_mul_u32_u24 v8, 80, v5')
    k('v_lshl_add_u32 v8, v6, 4, v8')
    k('v_add_u32 v8, %d, v8', UOFF-80*31)
    k('s_mul_i32 s66, s64, 640')
    k('v_subrev_u32 v8, s66, v8')
    k('s_waitcnt lgkmcnt(0)')
    k('s_barrier')
    its=[(dl,kk) for dl in range(8) for kk in range(2)]
    def issue(i):
        dl,kk=its[i]; b=16+16*(i%3)
        c0=32*dl-16*kk; c1=32*(dl+32)-16*kk
        k('ds_read_b128 v[%d:%d], v7 offset:%d', b, b+3, 2*(2016-c0))
        k('ds_read_b128 v[%d:%d], v7 offset:%d', b+4, b+7, 2*(2016-c1))
        ob=80*(31-dl)+32*kk
        k('ds_read_b128 v[%d:%d], v8 offset:%d', b+8, b+11, ob)
        k('ds_read_b128 v[%d:%d], v8 offset:%d', b+12, b+15, ob+2560)
    issue(0); issue(1)
    n=len(its)
    for i in range(n):
        if i+2<n:
            issue(i+2); k('s_waitcnt lgkmcnt(8)')
        elif i+1<n: k('s_waitcnt lgkmcnt(4)')
        else: k('s_waitcnt lgkmcnt(0)')
        b=16+16*(i%3)
        c0='0' if i==0 else 'v[64:79]'; c1='0' if i==0 else 'v[80:95]'
        k('v_mfma_f32_32x32x16_bf16 v[64:79], v[%d:%d], v[%d:%d], %s', b,b+3,b+8,b+11,c0)
        k('v_mfma_f32_32x32x16_bf16 v[80:95], v[%d:%d], v[%d:%d], %s', b,b+3,b+12,b+15,c1)
        k('v_mfma_f32_32x32x16_bf16 v[80:95], v[%d:%d], v[%d:%d], v[80:95]', b+4,b+7,b+8,b+11)
    k('s_barrier')
    k('v_and_b32 v4, 63, v0')
    k('v_lshlrev_b32 v4, 4, v4')
    k('s_lshl_b32 s66, s64, 13')
    k('v_add_u32 v3, s66, v4')
    for r4 in range(8):
        k('ds_write_b128 v3, v[%d:%d] offset:%d', 64+4*r4, 67+4*r4, 1024*r4)
    k('s_waitcnt lgkmcnt(0)')
    k('s_barrier')
    k('s_lshl_b32 s66, s64, 11')
    k('v_add_u32 v3, s66, v4')
    for j in range(2):
        for w in range(4):
            k('ds_read_b128 v[%d:%d], v3 offset:%d', 16+16*j+4*w, 19+16*j+4*w, 8192*w+1024*j)
    k('s_waitcnt lgkmcnt(0)')
    for j in range(2):
        for t in range(4):
            b=16+16*j+t
            k('v_add_f32 v%d, v%d, v%d', b, b, b+4)
            k('v_add_f32 v%d, v%d, v%d', b+8, b+8, b+12)
            k('v_add_f32 v%d, v%d, v%d', b, b, b+8)
        k('v_cvt_pk_bf16_f32 v%d, v%d, v%d', 48+2*j, 16+16*j, 17+16*j)
        k('v_cvt_pk_bf16_f32 v%d, v%d, v%d', 49+2*j, 18+16*j, 19+16*j)
    k('v_lshlrev_b32 v9, 6, v5')
    k('v_lshl_add_u32 v9, v6, 3, v9')
    k('s_lshr_b32 s66, s64, 1')
    k('s_lshl_b32 s66, s66, 11')
    k('s_and_b32 s67, s64, 1')
    k('s_lshl_b32 s67, s67, 5')
    k('s_add_u32 s66, s66, s67')
    k('s_add_u32 s66, s66, s65')
    k('buffer_store_dwordx2 v[48:49], v9, s[60:63], s66 offen')
    k('buffer_store_dwordx2 v[50:51], v9, s[60:63], s66 offen offset:16')
```

```python
from af2 import *
NG=86
def tab_store(k, g, src):
    k('buffer_store_dwordx4 v[%d:%d], v3, s[8:11], 0 offen offset:0' % (src,src+3) if False else 'v_add_u32 v15, %d, v3' % (g*1024))
    k('buffer_store_dwordx4 v[%d:%d], v15, s[8:11], 0 offen', src, src+3)

def body_TAB(k, wg='s2', pfx='TAB'):
    k('s_load_dwordx2 s[6:7], s[0:1], 112')
    k('v_and_b32 v1, 31, v0')
    k('v_bfe_u32 v2, v0, 5, 1')
    k('v_lshrrev_b32 v4, 6, v0')
    k('v_and_b32 v3, 63, v0')
    k('v_lshlrev_b32 v3, 4, v3')
    k('v_add_u32 v12, 32, v1')
    k('s_waitcnt lgkmcnt(0)')
    srd(k, 8, 6, NG*1024, WS_TAB)
    k('v_readfirstlane_b32 s22, v4')
    k('s_lshl_b32 s23, %s, 2', wg)
    k('s_add_u32 s22, s22, s23')
    jobs=[[] for _ in range(8)]
    def J(fn): jobs[min(range(8), key=lambda i: sum(c for c,_ in jobs[i]))].append(fn)
    def op_job(g, vA, N, elems):
        def e():
            const_operand(k, 16, vA, 2, N, elems, 8); tab_store(k, g, 16)
        J((8,e))
    for kk in range(4):
        el_re=[]; el_im=[]
        for j in range(8):
            c0=8*kk+(j>>1)
            if j&1==0: el_re.append((c0,4,'cos',False)); el_im.append((c0,4,'sin',True))
            else: el_re.append((c0,4,'sin',False)); el_im.append((c0,4,'cos',False))
        op_job(kk,1,32,el_re); op_job(4+kk,1,32,el_im)
    def tw_job(gc, gs, vA, c0s, N, neg):
        def e():
            for t,c0 in enumerate(c0s):
                angle(k, 8, vA, 2, c0, 4, N, 10)
                trig(k, 16+t, 8, 'cos'); trig(k, 20+t, 8, 'sin', neg)
            tab_store(k, gc, 16); tab_store(k, gs, 20)
        J((6,e))
    for mt in range(2):
        for g4 in range(4):
            tw_job(8+4*mt+g4, 16+4*mt+g4, 1, [32*mt+8*g4+i for i in range(4)], 2048, True)
    for mt in range(2):
        for ks in range(4):
            pk=perm_k(ks); vA=1 if mt==0 else 12
            gb=24+3*(4*mt+ks)
            op_job(gb,vA,64,[(c0,c1,'cos',False) for c0,c1 in pk])
            op_job(gb+1,vA,64,[(c0,c1,'sin',True) for c0,c1 in pk])
            op_job(gb+2,vA,64,[(c0,c1,'sin',False) for c0,c1 in pk])
    for nt in range(2):
        for g4 in range(4):
            tw_job(48+4*nt+g4, 56+4*nt+g4, 1 if nt==0 else 12, [8*g4+i for i in range(4)], 2048, False)
    for ks in range(2):
        pk=perm_k(ks)
        op_job(64+3*ks,1,32,[(c0,c1,'cos',False) for c0,c1 in pk])
        op_job(65+3*ks,1,32,[(c0,c1,'sin',False) for c0,c1 in pk])
        op_job(66+3*ks,1,32,[(c0,c1,'sin',True) for c0,c1 in pk])
    for kk in range(2):
        el_re=[]; el_im=[]
        for j in range(8):
            c0=8*kk+(j>>1)
            if j&1==0: el_re.append((c0,4,'cos',False)); el_im.append((c0,4,'sin',False))
            else: el_re.append((c0,4,'sin',True)); el_im.append((c0,4,'cos',False))
        op_job(70+kk,1,32,el_re); op_job(72+kk,1,32,el_im)
    for ks in range(2):
        pk=perm_k(ks)
        op_job(74+ks,1,32,[(c0,c1,'cos',False) for c0,c1 in pk])
        op_job(76+ks,1,32,[(c0,c1,'sin',True) for c0,c1 in pk])
    for g4 in range(4):
        tw_job(78+g4, 82+g4, 1, [8*g4+i for i in range(4)], 1024, False)
    for w in range(8):
        k('s_cmp_lg_u32 s22, %d', w)
        k('s_cbranch_scc1 %s_n%d', pfx, w)
        for c,e in jobs[w]:
            e()
            k('s_nop 1')
        k('s_branch %s_end', pfx)
        k.label('%s_n%d'%(pfx,w))
    k.label('%s_end'%pfx)

def body_B2v2(k, wg='s2', pfx='B2'):
    k('s_load_dwordx2 s[6:7], s[0:1], 112')
    k('v_and_b32 v1, 31, v0')
    k('v_bfe_u32 v2, v0, 5, 1')
    k('v_lshrrev_b32 v3, 6, v0')
    k('s_waitcnt lgkmcnt(0)')
    srd(k, 8, 6, 513*8192, WS_XC)
    srd(k, 12, 6, 513*8192, WS_WT)
    srd(k, 16, 6, 4194304, WS_ZC)
    srd(k, 32, 6, 8192, WS_ZN)
    srd(k, 36, 6, NG*1024, WS_TAB)
    k('v_readfirstlane_b32 s22, v3')
    k('s_and_b32 s20, %s, 31', wg)
    k('s_lshr_b32 s21, %s, 5', wg)
    k('s_lshl_b32 s23, s21, 2')
    k('s_add_u32 s23, s23, s22')
    k('s_lshl_b32 s23, s23, 5')
    k('s_add_u32 s23, s23, s20')
    k('s_cmp_gt_u32 s23, 512')
    k('s_cbranch_scc1 %s_skip', pfx)
    k('s_lshl_b32 s24, s23, 13')
    k('s_mov_b32 s25, 0x%x', f2u(2.0/(2048*1024)))
    k('s_and_b32 s26, s23, 511')
    k('s_cmp_eq_u32 s26, 0')
    k('s_cselect_b32 s25, 0x%x, s25', f2u(1.0/(2048*1024)))
    k('v_and_b32 v13, 63, v0')
    k('v_lshlrev_b32 v13, 4, v13')
    def tload(dst, g):
        k('s_mov_b32 s27, %d', (g//4)*4096)
        k('buffer_load_dwordx4 v[%d:%d], v13, s[36:39], s27 offen offset:%d', dst, dst+3, (g%4)*1024)
    k('v_lshlrev_b32 v4, 7, v1')
    k('v_lshl_add_u32 v4, v2, 4, v4')
    k('v_add_u32 v5, 4096, v4')
    for kk in range(4):
        k('buffer_load_dwordx4 v[%d:%d], v4, s[8:11], s24 offen offset:%d', 16+4*kk, 19+4*kk, 32*kk)
    for kk in range(4):
        k('buffer_load_dwordx4 v[%d:%d], v5, s[8:11], s24 offen offset:%d', 32+4*kk, 35+4*kk, 32*kk)
    for g in range(8): tload(48+4*g, g)
    for g in range(16): tload(144+4*g, 8+g)
    k('s_waitcnt vmcnt(16)')
    for mt in range(2):
        for kk in range(4):
            c_re='0' if kk==0 else 'v[%d:%d]'%(80+16*mt,95+16*mt)
            c_im='0' if kk==0 else 'v[%d:%d]'%(112+16*mt,127+16*mt)
            a=16+16*mt+4*kk
            k('v_mfma_f32_32x32x16_bf16 v[%d:%d], v[%d:%d], v[%d:%d], %s', 80+16*mt,95+16*mt,a,a+3,48+4*kk,51+4*kk,c_re)
            k('v_mfma_f32_32x32x16_bf16 v[%d:%d], v[%d:%d], v[%d:%d], %s', 112+16*mt,127+16*mt,a,a+3,64+4*kk,67+4*kk,c_im)
    k('v_lshlrev_b32 v6, 2, v1')
    k('v_lshl_add_u32 v6, v2, 9, v6')
    k('v_add_u32 v7, 4096, v6')
    for mt in range(2):
        for r in range(16):
            k('buffer_load_dword v%d, v%d, s[12:15], s24 offen offset:%d', 208+16*mt+r, 6+mt, 128*(8*(r>>2)+(r&3)))
    k('s_waitcnt vmcnt(32)')
    for e in range(32):
        cmul_tw(k, 80+e, 112+e, 144+e, 176+e, 11)
    for p in range(16):
        k('v_cvt_pk_bf16_f32 v%d, v%d, v%d', 16+p, 80+2*p, 81+2*p)
        k('v_cvt_pk_bf16_f32 v%d, v%d, v%d', 32+p, 112+2*p, 113+2*p)
    def greg(i):
        return 48+4*i if i<8 else 144+4*(i-8)
    for i in range(24): tload(greg(i), 24+i)
    for mt2 in range(2):
        for ks in range(4):
            i=3*(4*mt2+ks)
            k('s_waitcnt vmcnt(%d)', 24-(i+3))
            Gr=greg(i); Gi=greg(i+1); Gn=greg(i+2)
            R='v[%d:%d]'%(80+16*mt2,95+16*mt2); I='v[%d:%d]'%(112+16*mt2,127+16*mt2)
            pr=16+4*ks; pi=32+4*ks
            k('v_mfma_f32_32x32x16_bf16 %s, v[%d:%d], v[%d:%d], %s', R, Gr,Gr+3, pr,pr+3, '0' if ks==0 else R)
            k('v_mfma_f32_32x32x16_bf16 %s, v[%d:%d], v[%d:%d], %s', I, Gi,Gi+3, pr,pr+3, '0' if ks==0 else I)
            k('v_mfma_f32_32x32x16_bf16 %s, v[%d:%d], v[%d:%d], %s', R, Gn,Gn+3, pi,pi+3, R)
            k('v_mfma_f32_32x32x16_bf16 %s, v[%d:%d], v[%d:%d], %s', I, Gr,Gr+3, pi,pi+3, I)
    for e in range(32):
        k('v_lshlrev_b32 v9, 16, v%d', 208+e)
        k('v_and_b32 v10, 0xffff0000, v%d', 208+e)
        k('v_mul_f32 v9, s25, v9')
        k('v_mul_f32 v10, s25, v10')
        cmul_tw(k, 80+e, 112+e, 9, 10, 11)
    for g in range(8): tload(208+4*g, 48+g)
    for p in range(16):
        k('v_cvt_pk_bf16_f32 v%d, v%d, v%d', 16+p, 80+2*p, 81+2*p)
        k('v_cvt_pk_bf16_f32 v%d, v%d, v%d', 32+p, 112+2*p, 113+2*p)
    for nt in range(2):
        for ks in range(4):
            i=3*(4*nt+ks)
            C=greg(i); Sn=greg(i+1); S=greg(i+2)
            R='v[%d:%d]'%(80+16*nt,95+16*nt); I='v[%d:%d]'%(112+16*nt,127+16*nt)
            dr=16+4*ks; di=32+4*ks
            k('v_mfma_f32_32x32x16_bf16 %s, v[%d:%d], v[%d:%d], %s', R, dr,dr+3, C,C+3, '0' if ks==0 else R)
            k('v_mfma_f32_32x32x16_bf16 %s, v[%d:%d], v[%d:%d], %s', I, dr,dr+3, S,S+3, '0' if ks==0 else I)
            k('v_mfma_f32_32x32x16_bf16 %s, v[%d:%d], v[%d:%d], %s', R, di,di+3, Sn,Sn+3, R)
            k('v_mfma_f32_32x32x16_bf16 %s, v[%d:%d], v[%d:%d], %s', I, di,di+3, C,C+3, I)
    k('s_nop 7')
    for g in range(8): tload(144+4*g, 56+g)
    for g in range(6): tload(176+4*g, 64+g)
    k('s_waitcnt vmcnt(6)')
    for e in range(32):
        cmul_tw(k, 80+e, 112+e, 208+e, 144+e, 11)
    for p in range(16):
        k('v_cvt_pk_bf16_f32 v%d, v%d, v%d', 16+p, 80+2*p, 81+2*p)
        k('v_cvt_pk_bf16_f32 v%d, v%d, v%d', 32+p, 112+2*p, 113+2*p)
    k('s_waitcnt vmcnt(0)')
    for nt in range(2):
        R='v[%d:%d]'%(80+16*nt,95+16*nt); I='v[%d:%d]'%(112+16*nt,127+16*nt)
        for ks in range(2):
            pr=16+8*nt+4*ks; pi=32+8*nt+4*ks; c=176+12*ks
            k('v_mfma_f32_32x32x16_bf16 %s, v[%d:%d], v[%d:%d], %s', R, c,c+3, pr,pr+3, '0' if ks==0 else R)
            k('v_mfma_f32_32x32x16_bf16 %s, v[%d:%d], v[%d:%d], %s', I, c+4,c+7, pr,pr+3, '0' if ks==0 else I)
            k('v_mfma_f32_32x32x16_bf16 %s, v[%d:%d], v[%d:%d], %s', R, c+8,c+11, pi,pi+3, R)
            k('v_mfma_f32_32x32x16_bf16 %s, v[%d:%d], v[%d:%d], %s', I, c,c+3, pi,pi+3, I)
    k('s_cmp_eq_u32 s23, 512')
    k('s_cbranch_scc1 %s_nyq', pfx)
    k('v_lshl_add_u32 v4, v2, 8, v1')
    k('v_lshlrev_b32 v4, 4, v4')
    k('s_lshl_b32 s26, s22, 2')
    k('v_add_u32 v4, s26, v4')
    for nt in range(2):
        for r in range(16):
            k('v_cvt_pk_bf16_f32 v%d, v%d, v%d', 16+16*nt+r, 80+16*nt+r, 112+16*nt+r)
    for nt in range(2):
        for r in range(16):
            s1=8*(r>>2)+(r&3)
            k('ds_write_b32 v4, v%d offset:%d', 16+16*nt+r, 16*(64*s1+32*nt))
    k('s_branch %s_skip', pfx)
    k.label('%s_nyq'%pfx)
    k('v_lshl_add_u32 v4, v2, 8, v1')
    k('v_lshlrev_b32 v4, 2, v4')
    k('v_add_u32 v5, 4096, v4')
    for nt in range(2):
        for r in range(16):
            s1=8*(r>>2)+(r&3)
            off=4*(64*s1+32*nt)
            if off<4096: k('buffer_store_dword v%d, v4, s[32:35], 0 offen offset:%d', 80+16*nt+r, off)
            else: k('buffer_store_dword v%d, v5, s[32:35], 0 offen offset:%d', 80+16*nt+r, off-4096)
    k.label('%s_skip'%pfx)
    k('s_waitcnt lgkmcnt(0)')
    k('s_barrier')
    k('s_cmp_eq_u32 %s, 128', wg)
    k('s_cbranch_scc1 %s_done', pfx)
    k('s_lshl_b32 s26, s20, 6')
    k('s_lshl_b32 s27, s21, 4')
    k('s_add_u32 s26, s26, s27')
    k('v_lshlrev_b32 v7, 4, v0')
    k('v_lshlrev_b32 v8, 11, v0')
    for i in range(8):
        k('ds_read_b128 v[%d:%d], v7 offset:%d', 16+4*i, 19+4*i, 4096*i)
    k('s_waitcnt lgkmcnt(0)')
    for i in range(8):
        k('v_add_u32 v9, %d, v8', 2048*256*i)
        k('buffer_store_dwordx4 v[%d:%d], v9, s[16:19], s26 offen', 16+4*i, 19+4*i)
    k.label('%s_done'%pfx)
```

```python
import sys
from b2v2 import *
def merged(name, parts):
    k=Kern(name)
    base=0
    for i,(body,n,pfx) in enumerate(parts):
        k('s_cmp_lt_u32 s2, %d', base+n)
        k('s_cbranch_scc1 %s_part%d', name, i)
        base+=n
    k('s_endpgm')
    base=0
    for i,(body,n,pfx) in enumerate(parts):
        k.label('%s_part%d'%(name,i))
        k('s_sub_u32 s3, s2, %d', base)
        k('s_nop 4')
        body(k, 's3', pfx)
        k('s_waitcnt vmcnt(0) lgkmcnt(0)')
        k('s_endpgm')
        base+=n
    return k, base
hdr=[];ks=[]
for name,parts,lds in [
    ('l1_kernel',[(body_B1,128,'B1'),(body_TAB,2,'TAB'),(body_WT,288,'WT'),(body_T,512,'T')],34884),
    ('l2_kernel',[(body_B2v2,129,'B2'),(body_AF2,1024,'AF')],40960),
    ('l3_kernel',[(body_B3,256,'B3'),(body_EP,512,'EP')],9216)]:
    k,n=merged(name,parts)
    hdr.append('; @launch kernel=%s grid=(%d,1,1) block=(256,1,1) lds=%d'%(name,n,lds))
    ks.append(k)
emit_file(hdr, ks, sys.argv[1])
```

```python
from b2v2 import *
def body_B1v2(k, wg='s2', pfx='B1'):
    CST=32896
    k('s_load_dwordx2 s[4:5], s[0:1], 72')
    k('s_load_dwordx2 s[6:7], s[0:1], 112')
    k('s_and_b32 s20, %s, 63', wg)
    k('s_lshr_b32 s21, %s, 6', wg)
    k('v_and_b32 v1, 31, v0')
    k('v_bfe_u32 v2, v0, 5, 1')
    k('v_lshrrev_b32 v3, 6, v0')
    k('s_waitcnt lgkmcnt(0)')
    srd(k, 8, 4, 4194304)
    srd(k, 12, 6, 513*8192, WS_XC)
    k('v_readfirstlane_b32 s22, v3')
    k('v_lshlrev_b32 v4, 9, v2')
    k('v_lshl_add_u32 v4, v1, 1, v4')
    k('s_lshl_b32 s23, s21, 4')
    k('s_lshl_b32 s24, s22, 2')
    k('s_add_u32 s23, s23, s24')
    k('s_lshl_b32 s23, s23, 6')
    k('s_add_u32 s23, s23, s20')
    k('s_lshl_b32 s23, s23, 11')
    def loads(r):
        RB=96+16*(r%2)
        k('s_add_u32 s25, s23, %d', r*64*2048)
        for kk in range(2):
            for j in range(8):
                k('buffer_load_ushort v%d, v4, s[8:11], s25 offen offset:%d', RB+8*kk+j, 64*(16*kk+j))
    loads(0); loads(1)
    groups=[]
    for kk in range(2): groups.append(('op',32,[(16*kk+j,8,'cos',False) for j in range(8)]))
    for kk in range(2): groups.append(('op',32,[(16*kk+j,8,'sin',True) for j in range(8)]))
    for ks in range(2): groups.append(('op',32,[(c0,c1,'cos',False) for c0,c1 in perm_k(ks)]))
    for ks in range(2): groups.append(('op',32,[(c0,c1,'sin',True) for c0,c1 in perm_k(ks)]))
    for ks in range(2): groups.append(('op',32,[(c0,c1,'sin',False) for c0,c1 in perm_k(ks)]))
    for g4 in range(4): groups.append(('tw','cos',[8*g4+i for i in range(4)],False))
    for g4 in range(4): groups.append(('tw','sin',[8*g4+i for i in range(4)],True))
    k('v_and_b32 v13, 63, v0')
    k('v_lshlrev_b32 v13, 4, v13')
    assign=[[0,1,4,10,14],[2,3,5,11,15],[6,7,12,16],[8,9,13,17]]
    for w in range(4):
        k('s_cmp_lg_u32 s22, %d', w)
        k('s_cbranch_scc1 %s_c%d', pfx, w)
        for n,g in enumerate(assign[w]):
            G=groups[g]; D=16+4*n
            if G[0]=='op': const_operand(k, D, 1, 2, G[1], G[2], 8)
            else:
                for t,c0 in enumerate(G[2]):
                    angle(k, 8, 1, 2, c0, 4, 1024, 10)
                    trig(k, D+t, 8, G[1], G[3])
            k('ds_write_b128 v13, v[%d:%d] offset:%d', D, D+3, CST+1024*g)
        k.label('%s_c%d'%(pfx,w))
    k('s_waitcnt lgkmcnt(0)')
    k('s_barrier')
    for g in range(18):
        k('ds_read_b128 v[%d:%d], v13 offset:%d', 16+4*g, 19+4*g, CST+1024*g)
    k('v_bfe_u32 v5, v1, 2, 2')
    k('v_xor_b32 v5, s22, v5')
    k('v_lshlrev_b32 v5, 4, v5')
    k('v_lshl_add_u32 v5, v1, 6, v5')
    k('v_lshl_add_u32 v5, v2, 13, v5')
    k('v_and_b32 v8, 63, v0')
    k('s_waitcnt lgkmcnt(0)')
    for r in range(4):
        RB=96+16*(r%2)
        k('s_waitcnt vmcnt(%d)', 16 if r<3 else 0)
        for p in range(8):
            k('v_lshl_or_b32 v%d, v%d, 16, v%d', 88+p, RB+1+2*p, RB+2*p)
        if r+2<4: loads(r+2)
        k('v_mfma_f32_32x32x16_bf16 v[128:143], v[88:91], v[16:19], 0')
        k('v_mfma_f32_32x32x16_bf16 v[144:159], v[88:91], v[24:27], 0')
        k('v_mfma_f32_32x32x16_bf16 v[128:143], v[92:95], v[20:23], v[128:143]')
        k('v_mfma_f32_32x32x16_bf16 v[144:159], v[92:95], v[28:31], v[144:159]')
        for e in range(16):
            cmul_tw(k, 128+e, 144+e, 56+e, 72+e, 7)
        for p in range(8):
            k('v_cvt_pk_bf16_f32 v%d, v%d, v%d', 192+p, 128+2*p, 129+2*p)
            k('v_cvt_pk_bf16_f32 v%d, v%d, v%d', 200+p, 144+2*p, 145+2*p)
        k('v_mfma_f32_32x32x16_bf16 v[160:175], v[32:35], v[192:195], 0')
        k('v_mfma_f32_32x32x16_bf16 v[176:191], v[40:43], v[192:195], 0')
        k('v_mfma_f32_32x32x16_bf16 v[160:175], v[36:39], v[196:199], v[160:175]')
        k('v_mfma_f32_32x32x16_bf16 v[176:191], v[44:47], v[196:199], v[176:191]')
        k('v_mfma_f32_32x32x16_bf16 v[160:175], v[48:51], v[200:203], v[160:175]')
        k('v_mfma_f32_32x32x16_bf16 v[176:191], v[32:35], v[200:203], v[176:191]')
        k('v_mfma_f32_32x32x16_bf16 v[160:175], v[52:55], v[204:207], v[160:175]')
        k('v_mfma_f32_32x32x16_bf16 v[176:191], v[36:39], v[204:207], v[176:191]')
        for e in range(9):
            k('v_cvt_pk_bf16_f32 v%d, v%d, v%d', 208+e, 160+e, 176+e)
        for e in range(8):
            f2=8*(e>>2)+(e&3)
            k('ds_write_b32 v5, v%d offset:%d', 208+e, f2*32*64+4*r)
        k('v_cmp_eq_u32 vcc, 0, v8')
        k('s_and_saveexec_b64 s[26:27], vcc')
        k('ds_write_b32 v5, v216 offset:%d', 512*64+4*r)
        k('s_mov_b64 exec, s[26:27]')
    k('s_waitcnt lgkmcnt(0)')
    k('s_barrier')
    k('s_lshl_b32 s23, s20, 7')
    k('s_lshl_b32 s24, s21, 6')
    k('s_add_u32 s23, s23, s24')
    for i in range(9):
        k('v_add_u32 v4, %d, v0', 256*i)
        k('v_lshrrev_b32 v5, 2, v4')
        k('v_and_b32 v6, 3, v4')
        k('v_bfe_u32 v7, v5, 2, 2')
        k('v_xor_b32 v7, v7, v6')
        k('v_lshlrev_b32 v7, 4, v7')
        k('v_lshl_add_u32 v7, v5, 6, v7')
        k('ds_read_b128 v[%d:%d], v7', 96+4*i, 99+4*i)
        k('v_lshlrev_b32 v%d, 13, v5', 132+i)
        k('v_lshl_add_u32 v%d, v6, 4, v%d', 132+i, 132+i)
    k('s_waitcnt lgkmcnt(0)')
    for i in range(9):
        k('buffer_store_dwordx4 v[%d:%d], v%d, s[12:15], s23 offen', 96+4*i, 99+4*i, 132+i)
```

```python
from tr2 import *
def fangle(k, dst, fL, fLh, c0, c1, N):
    if c0==0:
        k('v_mul_f32 v%d, 0x%x, v%d', dst, f2u(c1/N), fLh)
    else:
        k('v_mul_f32 v%d, 0x%x, v%d', dst, f2u(c0/N), fL)
        if c1:
            k('s_mov_b32 s40, 0x%x', f2u(c1/N))
            k('v_fmac_f32 v%d, s40, v%d', dst, fLh)
def fconst_operand(k, dst, fL, fLh, N, elems, t0):
    for p in range(4):
        for s in range(2):
            c0,c1,fn,neg=elems[2*p+s]
            fangle(k, t0+s, fL, fLh, c0, c1, N)
        for s in range(2):
            c0,c1,fn,neg=elems[2*p+s]
            k('v_%s_f32 v%d, %sv%d', fn, t0+s, '-' if (neg and fn=='sin') else '', t0+s)
        k('v_cvt_pk_bf16_f32 v%d, v%d, v%d', dst+p, t0, t0+1)

def body_B1v3(k, wg='s2', pfx='B1'):
    CST=16448
    k('s_load_dwordx2 s[4:5], s[0:1], 72')
    k('s_load_dwordx2 s[6:7], s[0:1], 112')
    k('s_and_b32 s20, %s, 63', wg)
    k('s_lshr_b32 s21, %s, 6', wg)
    k('v_and_b32 v1, 31, v0')
    k('v_bfe_u32 v2, v0, 5, 1')
    k('v_lshrrev_b32 v3, 6, v0')
    k('s_waitcnt lgkmcnt(0)')
    srd(k, 8, 4, 4194304)
    srd(k, 12, 6, 513*8192, WS_XC)
    k('v_readfirstlane_b32 s22, v3')
    k('v_lshlrev_b32 v4, 9, v2')
    k('v_lshl_add_u32 v4, v1, 1, v4')
    k('s_lshl_b32 s23, s21, 3')
    k('s_lshl_b32 s24, s22, 1')
    k('s_add_u32 s23, s23, s24')
    k('s_lshl_b32 s23, s23, 6')
    k('s_add_u32 s23, s23, s20')
    k('s_lshl_b32 s23, s23, 11')
    for r in range(2):
        RB=96+16*r
        k('s_add_u32 s25, s23, %d', r*64*2048)
        for kk in range(2):
            for j in range(8):
                k('buffer_load_ushort v%d, v4, s[8:11], s25 offen offset:%d', RB+8*kk+j, 64*(16*kk+j))
    groups=[]
    for kk in range(2): groups.append(('op',32,[(16*kk+j,8,'cos',False) for j in range(8)]))
    for kk in range(2): groups.append(('op',32,[(16*kk+j,8,'sin',True) for j in range(8)]))
    for ks in range(2): groups.append(('op',32,[(c0,c1,'cos',False) for c0,c1 in perm_k(ks)]))
    for ks in range(2): groups.append(('op',32,[(c0,c1,'sin',True) for c0,c1 in perm_k(ks)]))
    for ks in range(2): groups.append(('op',32,[(c0,c1,'sin',False) for c0,c1 in perm_k(ks)]))
    for g4 in range(4): groups.append(('tw','cos',[8*g4+i for i in range(4)],False))
    for g4 in range(4): groups.append(('tw','sin',[8*g4+i for i in range(4)],True))
    k('v_and_b32 v13, 63, v0')
    k('v_lshlrev_b32 v13, 4, v13')
    k('v_cvt_f32_u32 v14, v1')
    k('v_mul_u32_u24 v15, v1, v2')
    k('v_cvt_f32_u32 v15, v15')
    assign=[[0,1,4,10,14],[2,3,5,11,15],[6,7,12,16],[8,9,13,17]]
    for w in range(4):
        k('s_cmp_lg_u32 s22, %d', w)
        k('s_cbranch_scc1 %s_c%d', pfx, w)
        for n,g in enumerate(assign[w]):
            G=groups[g]; D=16+4*n
            if G[0]=='op': fconst_operand(k, D, 14, 15, G[1], G[2], 8)
            else:
                for t,c0 in enumerate(G[2]):
                    fangle(k, D+t, 14, 15, c0, 4, 1024)
                for t in range(4):
                    k('v_%s_f32 v%d, %sv%d', G[1], D+t, '-' if G[3] else '', D+t)
            k('ds_write_b128 v13, v[%d:%d] offset:%d', D, D+3, CST+1024*g)
        k.label('%s_c%d'%(pfx,w))
    k('s_waitcnt lgkmcnt(0)')
    k('s_barrier')
    for g in range(18):
        k('ds_read_b128 v[%d:%d], v13 offset:%d', 16+4*g, 19+4*g, CST+1024*g)
    k('v_bfe_u32 v5, v1, 3, 1')
    k('s_lshr_b32 s24, s22, 1')
    k('v_xor_b32 v5, s24, v5')
    k('v_lshlrev_b32 v5, 4, v5')
    k('v_lshl_add_u32 v5, v1, 5, v5')
    k('v_lshl_add_u32 v5, v2, 12, v5')
    k('s_and_b32 s24, s22, 1')
    k('s_lshl_b32 s24, s24, 3')
    k('v_add_u32 v5, s24, v5')
    k('v_and_b32 v8, 63, v0')
    k('s_waitcnt vmcnt(0) lgkmcnt(0)')
    for r in range(2):
        RB=96+16*r
        for p in range(8):
            k('v_lshl_or_b32 v%d, v%d, 16, v%d', 88+8*r*0+p if False else RB+p, RB+1+2*p, RB+2*p) if p==0 else k('v_lshl_or_b32 v%d, v%d, 16, v%d', RB+p, RB+1+2*p, RB+2*p)
    for r in range(2):
        RB=96+16*r; O=128+64*r
        k('v_mfma_f32_32x32x16_bf16 v[%d:%d], v[%d:%d], v[16:19], 0', O,O+15,RB,RB+3)
        k('v_mfma_f32_32x32x16_bf16 v[%d:%d], v[%d:%d], v[24:27], 0', O+16,O+31,RB,RB+3)
        k('v_mfma_f32_32x32x16_bf16 v[%d:%d], v[%d:%d], v[20:23], v[%d:%d]', O,O+15,RB+4,RB+7,O,O+15)
        k('v_mfma_f32_32x32x16_bf16 v[%d:%d], v[%d:%d], v[28:31], v[%d:%d]', O+16,O+31,RB+4,RB+7,O+16,O+31)
    for r in range(2):
        RB=96+16*r; O=128+64*r
        for e in range(16):
            cmul_tw(k, O+e, O+16+e, 56+e, 72+e, 7)
        for p in range(8):
            k('v_cvt_pk_bf16_f32 v%d, v%d, v%d', RB+p, O+2*p, O+1+2*p)
            k('v_cvt_pk_bf16_f32 v%d, v%d, v%d', RB+8+p, O+16+2*p, O+17+2*p)
        R='v[%d:%d]'%(O+32,O+47); I='v[%d:%d]'%(O+48,O+63)
        k('v_mfma_f32_32x32x16_bf16 %s, v[32:35], v[%d:%d], 0', R, RB,RB+3)
        k('v_mfma_f32_32x32x16_bf16 %s, v[40:43], v[%d:%d], 0', I, RB,RB+3)
        k('v_mfma_f32_32x32x16_bf16 %s, v[36:39], v[%d:%d], %s', R, RB+4,RB+7, R)
        k('v_mfma_f32_32x32x16_bf16 %s, v[44:47], v[%d:%d], %s', I, RB+4,RB+7, I)
        k('v_mfma_f32_32x32x16_bf16 %s, v[48:51], v[%d:%d], %s', R, RB+8,RB+11, R)
        k('v_mfma_f32_32x32x16_bf16 %s, v[32:35], v[%d:%d], %s', I, RB+8,RB+11, I)
        k('v_mfma_f32_32x32x16_bf16 %s, v[52:55], v[%d:%d], %s', R, RB+12,RB+15, R)
        k('v_mfma_f32_32x32x16_bf16 %s, v[36:39], v[%d:%d], %s', I, RB+12,RB+15, I)
    for r in range(2):
        O=128+64*r
        for e in range(9):
            k('v_cvt_pk_bf16_f32 v%d, v%d, v%d', 88+e if False else 16+e+12*r, O+32+e, O+48+e)
        for e in range(8):
            f2=8*(e>>2)+(e&3)
            k('ds_write_b32 v5, v%d offset:%d', 16+e+12*r, f2*32*32+4*r)
        k('v_cmp_eq_u32 vcc, 0, v8')
        k('s_and_saveexec_b64 s[26:27], vcc')
        k('ds_write_b32 v5, v%d offset:%d', 24+12*r, 512*32+4*r)
        k('s_mov_b64 exec, s[26:27]')
    k('s_waitcnt lgkmcnt(0)')
    k('s_barrier')
    k('s_lshl_b32 s23, s20, 7')
    k('s_lshl_b32 s24, s21, 5')
    k('s_add_u32 s23, s23, s24')
    for i in range(5):
        k('v_add_u32 v4, %d, v0', 256*i)
        k('v_lshrrev_b32 v5, 1, v4')
        k('v_and_b32 v6, 1, v4')
        k('v_bfe_u32 v7, v5, 3, 1')
        k('v_xor_b32 v7, v7, v6')
        k('v_lshlrev_b32 v7, 4, v7')
        k('v_lshl_add_u32 v7, v5, 5, v7')
        k('ds_read_b128 v[%d:%d], v7', 96+4*i, 99+4*i)
        k('v_lshlrev_b32 v%d, 13, v5', 132+i)
        k('v_lshl_add_u32 v%d, v6, 4, v%d', 132+i, 132+i)
    k('s_waitcnt lgkmcnt(0)')
    for i in range(5):
        k('buffer_store_dwordx4 v[%d:%d], v%d, s[12:15], s23 offen', 96+4*i, 99+4*i, 132+i)
```

```python
from b3v2 import *
def body_B1v4(k, wg='s2', pfx='B1'):
    CST=32896
    k('s_load_dwordx2 s[4:5], s[0:1], 72')
    k('s_load_dwordx2 s[6:7], s[0:1], 112')
    k('s_and_b32 s20, %s, 63', wg)
    k('s_lshr_b32 s21, %s, 6', wg)
    k('v_and_b32 v1, 31, v0')
    k('v_bfe_u32 v2, v0, 5, 1')
    k('v_lshrrev_b32 v3, 6, v0')
    k('s_waitcnt lgkmcnt(0)')
    srd(k, 8, 4, 4194304)
    srd(k, 12, 6, 513*8192, WS_XC)
    k('v_readfirstlane_b32 s22, v3')
    k('v_lshlrev_b32 v4, 9, v2')
    k('v_lshl_add_u32 v4, v1, 1, v4')
    k('s_lshl_b32 s23, s21, 4')
    k('s_lshl_b32 s24, s22, 2')
    k('s_add_u32 s23, s23, s24')
    k('s_lshl_b32 s23, s23, 6')
    k('s_add_u32 s23, s23, s20')
    k('s_lshl_b32 s23, s23, 11')
    def loads(r):
        RB=56+16*(r%2)
        k('s_add_u32 s25, s23, %d', r*64*2048)
        for kk in range(2):
            for j in range(8):
                k('buffer_load_ushort v%d, v4, s[8:11], s25 offen offset:%d', RB+8*kk+j, 64*(16*kk+j))
    loads(0); loads(1)
    groups=[]
    for kk in range(2): groups.append(('op',32,[(16*kk+j,8,'cos',False) for j in range(8)]))
    for kk in range(2): groups.append(('op',32,[(16*kk+j,8,'sin',True) for j in range(8)]))
    for ks in range(2): groups.append(('op',32,[(c0,c1,'cos',False) for c0,c1 in perm_k(ks)]))
    for ks in range(2): groups.append(('op',32,[(c0,c1,'sin',True) for c0,c1 in perm_k(ks)]))
    for ks in range(2): groups.append(('op',32,[(c0,c1,'sin',False) for c0,c1 in perm_k(ks)]))
    for g4 in range(4): groups.append(('tw','cos',[8*g4+i for i in range(4)],False))
    for g4 in range(4): groups.append(('tw','sin',[8*g4+i for i in range(4)],True))
    k('v_and_b32 v13, 63, v0')
    k('v_lshlrev_b32 v13, 4, v13')
    k('v_cvt_f32_u32 v14, v1')
    k('v_mul_u32_u24 v15, v1, v2')
    k('v_cvt_f32_u32 v15, v15')
    assign=[[0,1,4,10,14],[2,3,5,11,15],[6,7,12,16],[8,9,13,17]]
    for w in range(4):
        k('s_cmp_lg_u32 s22, %d', w)
        k('s_cbranch_scc1 %s_c%d', pfx, w)
        for n,g in enumerate(assign[w]):
            G=groups[g]; D=16+4*n
            if G[0]=='op': fconst_operand(k, D, 14, 15, G[1], G[2], 8)
            else:
                for t,c0 in enumerate(G[2]):
                    fangle(k, D+t, 14, 15, c0, 4, 1024)
                for t in range(4):
                    k('v_%s_f32 v%d, %sv%d', G[1], D+t, '-' if G[3] else '', D+t)
            k('ds_write_b128 v13, v[%d:%d] offset:%d', D, D+3, CST+1024*g)
        k.label('%s_c%d'%(pfx,w))
    k('s_waitcnt lgkmcnt(0)')
    k('s_barrier')
    for g in range(10):
        k('ds_read_b128 v[%d:%d], v13 offset:%d', 16+4*g, 19+4*g, CST+1024*g)
    k('v_bfe_u32 v5, v1, 2, 2')
    k('v_xor_b32 v5, s22, v5')
    k('v_lshlrev_b32 v5, 4, v5')
    k('v_lshl_add_u32 v5, v1, 6, v5')
    k('v_lshl_add_u32 v5, v2, 13, v5')
    k('v_and_b32 v8, 63, v0')
    k('s_waitcnt lgkmcnt(0)')
    for r in range(4):
        RB=56+16*(r%2)
        k('s_waitcnt vmcnt(%d)', 16 if r<3 else 0)
        for p in range(8):
            k('v_lshl_or_b32 v%d, v%d, 16, v%d', 88+p, RB+1+2*p, RB+2*p)
        k('v_mfma_f32_32x32x16_bf16 v[96:111], v[88:91], v[16:19], 0')
        k('v_mfma_f32_32x32x16_bf16 v[112:127], v[88:91], v[24:27], 0')
        k('v_mfma_f32_32x32x16_bf16 v[96:111], v[92:95], v[20:23], v[96:111]')
        k('v_mfma_f32_32x32x16_bf16 v[112:127], v[92:95], v[28:31], v[112:127]')
        k('s_nop 3')
        def twld(c):
            T=88 if c%2==0 else RB
            k('ds_read_b128 v[%d:%d], v13 offset:%d', T, T+3, CST+1024*(10+c))
            k('ds_read_b128 v[%d:%d], v13 offset:%d', T+4, T+7, CST+1024*(14+c))
        twld(0); twld(1)
        for c in range(4):
            T=88 if c%2==0 else RB
            k('s_waitcnt lgkmcnt(%d)', 2 if c<3 else 0)
            for i in range(4):
                e=4*c+i
                cmul_tw(k, 96+e, 112+e, T+i, T+4+i, 7)
            if c+2<4: twld(c+2)
        for p in range(8):
            k('v_cvt_pk_bf16_f32 v%d, v%d, v%d', RB+p, 96+2*p, 97+2*p)
            k('v_cvt_pk_bf16_f32 v%d, v%d, v%d', RB+8+p, 112+2*p, 113+2*p)
        k('v_mfma_f32_32x32x16_bf16 v[96:111], v[32:35], v[%d:%d], 0', RB,RB+3)
        k('v_mfma_f32_32x32x16_bf16 v[112:127], v[40:43], v[%d:%d], 0', RB,RB+3)
        k('v_mfma_f32_32x32x16_bf16 v[96:111], v[36:39], v[%d:%d], v[96:111]', RB+4,RB+7)
        k('v_mfma_f32_32x32x16_bf16 v[112:127], v[44:47], v[%d:%d], v[112:127]', RB+4,RB+7)
        k('v_mfma_f32_32x32x16_bf16 v[96:111], v[48:51], v[%d:%d], v[96:111]', RB+8,RB+11)
        k('v_mfma_f32_32x32x16_bf16 v[112:127], v[32:35], v[%d:%d], v[112:127]', RB+8,RB+11)
        k('v_mfma_f32_32x32x16_bf16 v[96:111], v[52:55], v[%d:%d], v[96:111]', RB+12,RB+15)
        k('v_mfma_f32_32x32x16_bf16 v[112:127], v[36:39], v[%d:%d], v[112:127]', RB+12,RB+15)
        k('s_nop 7')
        if r+2<4: loads(r+2)
        for e in range(9):
            k('v_cvt_pk_bf16_f32 v%d, v%d, v%d', 88+e if e<8 else 9, 96+e, 112+e)
        for e in range(8):
            f2=8*(e>>2)+(e&3)
            k('ds_write_b32 v5, v%d offset:%d', 88+e, f2*32*64+4*r)
        k('v_cmp_eq_u32 vcc, 0, v8')
        k('s_and_saveexec_b64 s[26:27], vcc')
        k('ds_write_b32 v5, v9 offset:%d', 512*64+4*r)
        k('s_mov_b64 exec, s[26:27]')
    k('s_waitcnt lgkmcnt(0)')
    k('s_barrier')
    k('s_lshl_b32 s23, s20, 7')
    k('s_lshl_b32 s24, s21, 6')
    k('s_add_u32 s23, s23, s24')
    for i in range(9):
        k('v_add_u32 v4, %d, v0', 256*i)
        k('v_lshrrev_b32 v5, 2, v4')
        k('v_and_b32 v6, 3, v4')
        k('v_bfe_u32 v7, v5, 2, 2')
        k('v_xor_b32 v7, v7, v6')
        k('v_lshlrev_b32 v7, 4, v7')
        k('v_lshl_add_u32 v7, v5, 6, v7')
        k('ds_read_b128 v[%d:%d], v7', 16+4*i, 19+4*i)
        k('v_lshlrev_b32 v%d, 13, v5', 56+i)
        k('v_lshl_add_u32 v%d, v6, 4, v%d', 56+i, 56+i)
    k('s_waitcnt lgkmcnt(0)')
    for i in range(9):
        k('buffer_store_dwordx4 v[%d:%d], v%d, s[12:15], s23 offen', 16+4*i, 19+4*i, 56+i)
```

```python
from b1v4 import *
def body_B2v3(k, wg='s2', pfx='B2'):
    k('s_load_dwordx2 s[6:7], s[0:1], 112')
    k('v_and_b32 v1, 31, v0')
    k('v_bfe_u32 v2, v0, 5, 1')
    k('v_lshrrev_b32 v3, 6, v0')
    k('s_waitcnt lgkmcnt(0)')
    srd(k, 8, 6, 513*8192, WS_XC)
    srd(k, 12, 6, 513*8192, WS_WT)
    srd(k, 16, 6, 4194304, WS_ZC)
    srd(k, 32, 6, 8192, WS_ZN)
    srd(k, 36, 6, NG*1024, WS_TAB)
    k('v_readfirstlane_b32 s22, v3')
    k('s_and_b32 s20, %s, 31', wg)
    k('s_lshr_b32 s21, %s, 5', wg)
    k('s_lshl_b32 s23, s21, 2')
    k('s_add_u32 s23, s23, s22')
    k('s_lshl_b32 s23, s23, 5')
    k('s_add_u32 s23, s23, s20')
    k('v_and_b32 v13, 63, v0')
    k('v_lshlrev_b32 v13, 4, v13')
    k('s_cmp_gt_u32 s23, 512')
    k('s_cbranch_scc1 %s_skip0', pfx)
    k('s_lshl_b32 s24, s23, 13')
    k('s_mov_b32 s25, 0x%x', f2u(2.0/(2048*1024)))
    k('s_and_b32 s26, s23, 511')
    k('s_cmp_eq_u32 s26, 0')
    k('s_cselect_b32 s25, 0x%x, s25', f2u(1.0/(2048*1024)))
    k('v_and_b32 v13, 63, v0')
    k('v_lshlrev_b32 v13, 4, v13')
    k('s_lshl_b32 s28, s22, 12')
    k('v_add_u32 v14, s28, v13')
    def tload(dst, g):
        k('s_mov_b32 s27, %d', (g//4)*4096)
        k('buffer_load_dwordx4 v[%d:%d], v13, s[36:39], s27 offen offset:%d', dst, dst+3, (g%4)*1024)
    AR=48; AI=64; C=80
    R='v[48:63]'; I='v[64:79]'
    k('v_lshlrev_b32 v4, 7, v1')
    k('v_lshl_add_u32 v4, v2, 4, v4')
    k('v_add_u32 v5, 4096, v4')
    for kk in range(4):
        k('buffer_load_dwordx4 v[%d:%d], v4, s[8:11], s24 offen offset:%d', 16+4*kk, 19+4*kk, 32*kk)
    for kk in range(4):
        k('buffer_load_dwordx4 v[%d:%d], v5, s[8:11], s24 offen offset:%d', 32+4*kk, 35+4*kk, 32*kk)
    for g in range(8): tload(C+4*g, g)
    k('v_lshlrev_b32 v6, 2, v1')
    k('v_lshl_add_u32 v6, v2, 9, v6')
    k('v_add_u32 v7, 4096, v6')
    def twpass(gc, gs):
        for hf in range(2):
            for g in range(2):
                tload(112+4*g, gc+2*hf+g); tload(120+4*g, gs+2*hf+g)
            k('s_waitcnt vmcnt(0)')
            for e in range(8):
                cmul_tw(k, AR+8*hf+e, AI+8*hf+e, 112+e, 120+e, 11)
    for mt in range(2):
        if mt==0: k('s_waitcnt vmcnt(0)')
        for kk in range(4):
            a=16+16*mt+4*kk
            k('v_mfma_f32_32x32x16_bf16 %s, v[%d:%d], v[%d:%d], %s', R,a,a+3,C+4*kk,C+3+4*kk,'0' if kk==0 else R)
            k('v_mfma_f32_32x32x16_bf16 %s, v[%d:%d], v[%d:%d], %s', I,a,a+3,C+16+4*kk,C+19+4*kk,'0' if kk==0 else I)
        twpass(8+4*mt, 16+4*mt)
        for p in range(8):
            k('v_cvt_pk_bf16_f32 v%d, v%d, v%d', 16+16*mt+p, AR+2*p, AR+1+2*p)
            k('v_cvt_pk_bf16_f32 v%d, v%d, v%d', 24+16*mt+p, AI+2*p, AI+1+2*p)
    def PR(ks): return 16+16*(ks>>1)+4*(ks&1)
    def PI(ks): return 24+16*(ks>>1)+4*(ks&1)
    for mt2 in range(2):
        k('s_nop 4')
        for i in range(12): tload(C+4*i, 24+12*mt2+i)
        for ks in range(4):
            k('s_waitcnt vmcnt(%d)', 12-3*(ks+1))
            Gr=C+12*ks; Gi=Gr+4; Gn=Gr+8
            pr=PR(ks); pi=PI(ks)
            k('v_mfma_f32_32x32x16_bf16 %s, v[%d:%d], v[%d:%d], %s', R, Gr,Gr+3, pr,pr+3, '0' if ks==0 else R)
            k('v_mfma_f32_32x32x16_bf16 %s, v[%d:%d], v[%d:%d], %s', I, Gi,Gi+3, pr,pr+3, '0' if ks==0 else I)
            k('v_mfma_f32_32x32x16_bf16 %s, v[%d:%d], v[%d:%d], %s', R, Gn,Gn+3, pi,pi+3, R)
            k('v_mfma_f32_32x32x16_bf16 %s, v[%d:%d], v[%d:%d], %s', I, Gr,Gr+3, pi,pi+3, I)
        k('s_nop 7')
        for r in range(16):
            k('buffer_load_dword v%d, v%d, s[12:15], s24 offen offset:%d', C+r, 6+mt2, 128*(8*(r>>2)+(r&3)))
        k('s_waitcnt vmcnt(0)')
        for e in range(16):
            k('v_lshlrev_b32 v9, 16, v%d', C+e)
            k('v_and_b32 v10, 0xffff0000, v%d', C+e)
            k('v_mul_f32 v9, s25, v9')
            k('v_mul_f32 v10, s25, v10')
            cmul_tw(k, AR+e, AI+e, 9, 10, 11)
        if mt2==0:
            for p in range(8):
                k('v_cvt_pk_bf16_f32 v%d, v%d, v%d', 96+p, AR+2*p, AR+1+2*p)
                k('v_cvt_pk_bf16_f32 v%d, v%d, v%d', 104+p, AI+2*p, AI+1+2*p)
            for q in range(4):
                k('ds_write_b128 v14, v[%d:%d] offset:%d', 96+4*q, 99+4*q, 1024*q)
        else:
            for p in range(8):
                k('v_cvt_pk_bf16_f32 v%d, v%d, v%d', 32+p, AR+2*p, AR+1+2*p)
                k('v_cvt_pk_bf16_f32 v%d, v%d, v%d', 40+p, AI+2*p, AI+1+2*p)
            k('s_waitcnt lgkmcnt(0)')
            for q in range(4):
                k('ds_read_b128 v[%d:%d], v14 offset:%d', 16+4*q, 19+4*q, 1024*q)
            k('s_waitcnt lgkmcnt(0)')
    k.label('%s_skip0'%pfx)
    k('s_barrier')
    k('s_cmp_gt_u32 s23, 512')
    k('s_cbranch_scc1 %s_skip', pfx)
    k('v_lshl_add_u32 v4, v2, 8, v1')
    k('v_lshlrev_b32 v8, 2, v4')
    k('v_lshlrev_b32 v4, 4, v4')
    k('s_lshl_b32 s26, s22, 2')
    k('v_add_u32 v4, s26, v4')
    k('v_add_u32 v5, 4096, v8')
    for nt in range(2):
        k('s_nop 4')
        for i in range(12): tload(C+4*i, 24+12*nt+i)
        for ks in range(4):
            k('s_waitcnt vmcnt(%d)', 12-3*(ks+1))
            Cc=C+12*ks; Sn=Cc+4; S=Cc+8
            dr=PR(ks); di=PI(ks)
            k('v_mfma_f32_32x32x16_bf16 %s, v[%d:%d], v[%d:%d], %s', R, dr,dr+3, Cc,Cc+3, '0' if ks==0 else R)
            k('v_mfma_f32_32x32x16_bf16 %s, v[%d:%d], v[%d:%d], %s', I, dr,dr+3, S,S+3, '0' if ks==0 else I)
            k('v_mfma_f32_32x32x16_bf16 %s, v[%d:%d], v[%d:%d], %s', R, di,di+3, Sn,Sn+3, R)
            k('v_mfma_f32_32x32x16_bf16 %s, v[%d:%d], v[%d:%d], %s', I, di,di+3, Cc,Cc+3, I)
        k('s_nop 7')
        for g in range(6): tload(88+4*g, 64+g)
        twpass(48+4*nt, 56+4*nt)
        for p in range(8):
            k('v_cvt_pk_bf16_f32 v%d, v%d, v%d', 80+p, AR+2*p, AR+1+2*p)
            k('v_cvt_pk_bf16_f32 v%d, v%d, v%d', 112+p, AI+2*p, AI+1+2*p)
        for ks in range(2):
            pr=80+4*ks; pi=112+4*ks; c=88+12*ks
            k('v_mfma_f32_32x32x16_bf16 %s, v[%d:%d], v[%d:%d], %s', R, c,c+3, pr,pr+3, '0' if ks==0 else R)
            k('v_mfma_f32_32x32x16_bf16 %s, v[%d:%d], v[%d:%d], %s', I, c+4,c+7, pr,pr+3, '0' if ks==0 else I)
            k('v_mfma_f32_32x32x16_bf16 %s, v[%d:%d], v[%d:%d], %s', R, c+8,c+11, pi,pi+3, R)
            k('v_mfma_f32_32x32x16_bf16 %s, v[%d:%d], v[%d:%d], %s', I, c,c+3, pi,pi+3, I)
        k('s_cmp_eq_u32 s23, 512')
        k('s_cbranch_scc1 %s_nyq%d', pfx, nt)
        for r in range(16):
            k('v_cvt_pk_bf16_f32 v%d, v%d, v%d', 96+r, AR+r, AI+r)
        for r in range(16):
            s1=8*(r>>2)+(r&3)
            k('ds_write_b32 v4, v%d offset:%d', 96+r, 16*(64*s1+32*nt))
        k('s_branch %s_nx%d', pfx, nt)
        k.label('%s_nyq%d'%(pfx,nt))
        k('s_nop 7')
        k('s_nop 7')
        for r in range(16):
            s1=8*(r>>2)+(r&3)
            off=4*(64*s1+32*nt)
            if off<4096: k('buffer_store_dword v%d, v8, s[32:35], 0 offen offset:%d', AR+r, off)
            else: k('buffer_store_dword v%d, v5, s[32:35], 0 offen offset:%d', AR+r, off-4096)
        k.label('%s_nx%d'%(pfx,nt))
        k('s_nop 7')
    k.label('%s_skip'%pfx)
    k('s_waitcnt lgkmcnt(0)')
    k('s_barrier')
    k('s_cmp_eq_u32 %s, 128', wg)
    k('s_cbranch_scc1 %s_done', pfx)
    k('s_lshl_b32 s26, s20, 6')
    k('s_lshl_b32 s27, s21, 4')
    k('s_add_u32 s26, s26, s27')
    k('v_lshlrev_b32 v7, 4, v0')
    k('v_lshlrev_b32 v8, 11, v0')
    for i in range(8):
        k('ds_read_b128 v[%d:%d], v7 offset:%d', 16+4*i, 19+4*i, 4096*i)
    k('s_waitcnt lgkmcnt(0)')
    for i in range(8):
        k('v_add_u32 v9, %d, v8', 2048*256*i)
        k('buffer_store_dwordx4 v[%d:%d], v9, s[16:19], s26 offen', 16+4*i, 19+4*i)
    k.label('%s_done'%pfx)
```

```python
from b1v3 import *
def body_B3v2(k, wg='s2', pfx='B3', rows=2):
    k('s_load_dwordx2 s[6:7], s[0:1], 112')
    k('s_load_dwordx2 s[30:31], s[0:1], 96')
    k('v_and_b32 v1, 31, v0')
    k('v_bfe_u32 v2, v0, 5, 1')
    k('v_lshrrev_b32 v3, 6, v0')
    k('s_waitcnt lgkmcnt(0)')
    srd(k, 8, 6, 4194304, WS_ZC)
    srd(k, 12, 6, 8192, WS_ZN)
    srd(k, 36, 30, 8388608)
    srd(k, 40, 6, NG*1024, WS_TAB)
    k('v_readfirstlane_b32 s22, v3')
    k('v_lshlrev_b32 v4, 6, v1')
    k('v_lshl_add_u32 v4, v2, 4, v4')
    k('s_lshl_b32 s23, %s, 2', wg)
    k('s_add_u32 s23, s23, s22')
    k('s_mul_i32 s23, s23, %d', rows)
    k('v_mov_b32 v9, 0')
    for r in range(rows):
        k('s_add_u32 s27, s23, %d', r)
        k('s_lshl_b32 s24, s27, 11')
        k('s_lshl_b32 s25, s27, 2')
        k('buffer_load_dwordx4 v[%d:%d], v4, s[8:11], s24 offen', 96+8*r, 99+8*r)
        k('buffer_load_dwordx4 v[%d:%d], v4, s[8:11], s24 offen offset:32', 100+8*r, 103+8*r)
        k('buffer_load_dword v%d, v9, s[12:15], s25 offen', 10+r)
    k('v_and_b32 v13, 63, v0')
    k('v_lshlrev_b32 v13, 4, v13')
    for g in range(16):
        gg=70+g
        k('s_mov_b32 s27, %d', (gg//4)*4096)
        k('buffer_load_dwordx4 v[%d:%d], v13, s[40:43], s27 offen offset:%d', 16+4*g, 19+4*g, (gg%4)*1024)
    k('v_lshlrev_b32 v5, 31, v1')
    k('v_lshlrev_b32 v6, 8, v2')
    k('v_lshl_add_u32 v6, v1, 1, v6')
    k('v_add_u32 v6, 2048, v6')
    k('s_waitcnt vmcnt(12)')
    for r in range(rows):
        D=96+8*r; O=128+48*r
        k('v_mfma_f32_32x32x16_bf16 v[%d:%d], v[%d:%d], v[16:19], 0', O,O+15,D,D+3)
        k('v_mfma_f32_32x32x16_bf16 v[%d:%d], v[%d:%d], v[24:27], 0', O+16,O+31,D,D+3)
        k('v_mfma_f32_32x32x16_bf16 v[%d:%d], v[%d:%d], v[20:23], v[%d:%d]', O,O+15,D+4,D+7,O,O+15)
        k('v_mfma_f32_32x32x16_bf16 v[%d:%d], v[%d:%d], v[28:31], v[%d:%d]', O+16,O+31,D+4,D+7,O+16,O+31)
    k('s_waitcnt vmcnt(0)')
    for r in range(rows):
        O=128+48*r; P=80+0
        PB=112
        for e in range(16):
            cmul_tw(k, O+e, O+16+e, 48+e, 64+e, 8)
        for p in range(8):
            k('v_cvt_pk_bf16_f32 v%d, v%d, v%d', PB+p, O+2*p, O+1+2*p)
            k('v_cvt_pk_bf16_f32 v%d, v%d, v%d', PB+8+p, O+16+2*p, O+17+2*p)
        k('v_xor_b32 v7, v%d, v5', 10+r)
        Y=O+32
        for e in range(16): k('v_mov_b32 v%d, v7', Y+e)
        YY='v[%d:%d]'%(Y,Y+15)
        k('v_mfma_f32_32x32x16_bf16 %s, v[32:35], v[%d:%d], %s', YY, PB,PB+3, YY)
        k('v_mfma_f32_32x32x16_bf16 %s, v[36:39], v[%d:%d], %s', YY, PB+4,PB+7, YY)
        k('v_mfma_f32_32x32x16_bf16 %s, v[40:43], v[%d:%d], %s', YY, PB+8,PB+11, YY)
        k('v_mfma_f32_32x32x16_bf16 %s, v[44:47], v[%d:%d], %s', YY, PB+12,PB+15, YY)
    for r in range(rows):
        Y=128+48*r+32
        k('s_add_u32 s27, s23, %d', r)
        k('s_lshl_b32 s26, s27, 12')
        for p in range(8):
            k('v_cvt_pk_bf16_f32 v%d, v%d, v%d', 80+8*r+p, Y+2*p, Y+1+2*p)
        for p in range(8):
            r0=2*p; d1=8*(r0>>2)+(r0&3)
            k('buffer_store_short v%d, v6, s[36:39], s26 offen offset:%d', 80+8*r+p, 64*d1)
            k('buffer_store_short_d16_hi v%d, v6, s[36:39], s26 offen offset:%d', 80+8*r+p, 64*(d1+1))

def body_B1v2f(k, wg='s2', pfx='B1'):
    CST=32896
    k('s_load_dwordx2 s[4:5], s[0:1], 72')
    k('s_load_dwordx2 s[6:7], s[0:1], 112')
    k('s_and_b32 s20, %s, 63', wg)
    k('s_lshr_b32 s21, %s, 6', wg)
    k('v_and_b32 v1, 31, v0')
    k('v_bfe_u32 v2, v0, 5, 1')
    k('v_lshrrev_b32 v3, 6, v0')
    k('s_waitcnt lgkmcnt(0)')
    srd(k, 8, 4, 4194304)
    srd(k, 12, 6, 513*8192, WS_XC)
    k('v_readfirstlane_b32 s22, v3')
    k('v_lshlrev_b32 v4, 9, v2')
    k('v_lshl_add_u32 v4, v1, 1, v4')
    k('s_lshl_b32 s23, s21, 4')
    k('s_lshl_b32 s24, s22, 2')
    k('s_add_u32 s23, s23, s24')
    k('s_lshl_b32 s23, s23, 6')
    k('s_add_u32 s23, s23, s20')
    k('s_lshl_b32 s23, s23, 11')
    def loads(r):
        RB=96+16*(r%2)
        k('s_add_u32 s25, s23, %d', r*64*2048)
        for kk in range(2):
            for j in range(8):
                k('buffer_load_ushort v%d, v4, s[8:11], s25 offen offset:%d', RB+8*kk+j, 64*(16*kk+j))
    loads(0); loads(1)
    groups=[]
    for kk in range(2): groups.append(('op',32,[(16*kk+j,8,'cos',False) for j in range(8)]))
    for kk in range(2): groups.append(('op',32,[(16*kk+j,8,'sin',True) for j in range(8)]))
    for ks in range(2): groups.append(('op',32,[(c0,c1,'cos',False) for c0,c1 in perm_k(ks)]))
    for ks in range(2): groups.append(('op',32,[(c0,c1,'sin',True) for c0,c1 in perm_k(ks)]))
    for ks in range(2): groups.append(('op',32,[(c0,c1,'sin',False) for c0,c1 in perm_k(ks)]))
    for g4 in range(4): groups.append(('tw','cos',[8*g4+i for i in range(4)],False))
    for g4 in range(4): groups.append(('tw','sin',[8*g4+i for i in range(4)],True))
    k('v_and_b32 v13, 63, v0')
    k('v_lshlrev_b32 v13, 4, v13')
    k('v_cvt_f32_u32 v14, v1')
    k('v_mul_u32_u24 v15, v1, v2')
    k('v_cvt_f32_u32 v15, v15')
    assign=[[0,1,4,10,14],[2,3,5,11,15],[6,7,12,16],[8,9,13,17]]
    for w in range(4):
        k('s_cmp_lg_u32 s22, %d', w)
        k('s_cbranch_scc1 %s_c%d', pfx, w)
        for n,g in enumerate(assign[w]):
            G=groups[g]; D=16+4*n
            if G[0]=='op': fconst_operand(k, D, 14, 15, G[1], G[2], 8)
            else:
                for t,c0 in enumerate(G[2]):
                    fangle(k, D+t, 14, 15, c0, 4, 1024)
                for t in range(4):
                    k('v_%s_f32 v%d, %sv%d', G[1], D+t, '-' if G[3] else '', D+t)
            k('ds_write_b128 v13, v[%d:%d] offset:%d', D, D+3, CST+1024*g)
        k.label('%s_c%d'%(pfx,w))
    k('s_waitcnt lgkmcnt(0)')
    k('s_barrier')
    for g in range(18):
        k('ds_read_b128 v[%d:%d], v13 offset:%d', 16+4*g, 19+4*g, CST+1024*g)
    k('v_bfe_u32 v5, v1, 2, 2')
    k('v_xor_b32 v5, s22, v5')
    k('v_lshlrev_b32 v5, 4, v5')
    k('v_lshl_add_u32 v5, v1, 6, v5')
    k('v_lshl_add_u32 v5, v2, 13, v5')
    k('v_and_b32 v8, 63, v0')
    k('s_waitcnt lgkmcnt(0)')
    for r in range(4):
        RB=96+16*(r%2)
        k('s_waitcnt vmcnt(%d)', 16 if r<3 else 0)
        for p in range(8):
            k('v_lshl_or_b32 v%d, v%d, 16, v%d', 88+p, RB+1+2*p, RB+2*p)
        if r+2<4: loads(r+2)
        k('v_mfma_f32_32x32x16_bf16 v[128:143], v[88:91], v[16:19], 0')
        k('v_mfma_f32_32x32x16_bf16 v[144:159], v[88:91], v[24:27], 0')
        k('v_mfma_f32_32x32x16_bf16 v[128:143], v[92:95], v[20:23], v[128:143]')
        k('v_mfma_f32_32x32x16_bf16 v[144:159], v[92:95], v[28:31], v[144:159]')
        for e in range(16):
            cmul_tw(k, 128+e, 144+e, 56+e, 72+e, 7)
        for p in range(8):
            k('v_cvt_pk_bf16_f32 v%d, v%d, v%d', 192+p, 128+2*p, 129+2*p)
            k('v_cvt_pk_bf16_f32 v%d, v%d, v%d', 200+p, 144+2*p, 145+2*p)
        k('v_mfma_f32_32x32x16_bf16 v[160:175], v[32:35], v[192:195], 0')
        k('v_mfma_f32_32x32x16_bf16 v[176:191], v[40:43], v[192:195], 0')
        k('v_mfma_f32_32x32x16_bf16 v[160:175], v[36:39], v[196:199], v[160:175]')
        k('v_mfma_f32_32x32x16_bf16 v[176:191], v[44:47], v[196:199], v[176:191]')
        k('v_mfma_f32_32x32x16_bf16 v[160:175], v[48:51], v[200:203], v[160:175]')
        k('v_mfma_f32_32x32x16_bf16 v[176:191], v[32:35], v[200:203], v[176:191]')
        k('v_mfma_f32_32x32x16_bf16 v[160:175], v[52:55], v[204:207], v[160:175]')
        k('v_mfma_f32_32x32x16_bf16 v[176:191], v[36:39], v[204:207], v[176:191]')
        for e in range(9):
            k('v_cvt_pk_bf16_f32 v%d, v%d, v%d', 208+e, 160+e, 176+e)
        for e in range(8):
            f2=8*(e>>2)+(e&3)
            k('ds_write_b32 v5, v%d offset:%d', 208+e, f2*32*64+4*r)
        k('v_cmp_eq_u32 vcc, 0, v8')
        k('s_and_saveexec_b64 s[26:27], vcc')
        k('ds_write_b32 v5, v216 offset:%d', 512*64+4*r)
        k('s_mov_b64 exec, s[26:27]')
    k('s_waitcnt lgkmcnt(0)')
    k('s_barrier')
    k('s_lshl_b32 s23, s20, 7')
    k('s_lshl_b32 s24, s21, 6')
    k('s_add_u32 s23, s23, s24')
    for i in range(9):
        k('v_add_u32 v4, %d, v0', 256*i)
        k('v_lshrrev_b32 v5, 2, v4')
        k('v_and_b32 v6, 3, v4')
        k('v_bfe_u32 v7, v5, 2, 2')
        k('v_xor_b32 v7, v7, v6')
        k('v_lshlrev_b32 v7, 4, v7')
        k('v_lshl_add_u32 v7, v5, 6, v7')
        k('ds_read_b128 v[%d:%d], v7', 96+4*i, 99+4*i)
        k('v_lshlrev_b32 v%d, 13, v5', 132+i)
        k('v_lshl_add_u32 v%d, v6, 4, v%d', 132+i, 132+i)
    k('s_waitcnt lgkmcnt(0)')
    for i in range(9):
        k('buffer_store_dwordx4 v[%d:%d], v%d, s[12:15], s23 offen', 96+4*i, 99+4*i, 132+i)
```

```python
from b1v2 import *
def body_T2(k, wg='s2', pfx='T', NT=4):
    nd=16//NT
    k('s_load_dwordx2 s[4:5], s[0:1], 0')
    k('s_load_dwordx2 s[6:7], s[0:1], 112')
    k('s_and_b32 s20, %s, %d', wg, nd-1)
    k('s_lshr_b32 s21, %s, %d', wg, nd.bit_length()-1)
    k('s_waitcnt lgkmcnt(0)')
    srd(k, 8, 4, 4194304)
    srd(k, 12, 6, 4194304, WS_UT)
    k('v_and_b32 v1, 7, v0')
    k('v_lshrrev_b32 v2, 3, v0')
    k('s_lshl_b32 s22, s21, 6')
    k('s_mul_i32 s23, s20, %d', 128*NT)
    k('v_add_u32 v3, s22, v2')
    k('v_lshlrev_b32 v3, 11, v3')
    k('v_lshlrev_b32 v4, 4, v1')
    k('v_add_u32 v3, v3, v4')
    k('v_add_u32 v3, s23, v3')
    k('v_add_u32 v5, 0x10000, v3')
    for t in range(NT):
        k('buffer_load_dwordx4 v[%d:%d], v3, s[8:11], 0 offen offset:%d', 16+8*t, 19+8*t, 128*t)
        k('buffer_load_dwordx4 v[%d:%d], v5, s[8:11], 0 offen offset:%d', 20+8*t, 23+8*t, 128*t)
    k('v_mul_u32_u24 v6, 144, v2')
    k('v_add_u32 v6, v6, v4')
    for t in range(NT):
        k('s_waitcnt vmcnt(%d)', 2*(NT-t)-1)
        k('ds_write_b128 v6, v[%d:%d] offset:%d', 16+8*t, 19+8*t, 9216*t)
        k('s_waitcnt vmcnt(%d)', 2*(NT-t)-2)
        k('ds_write_b128 v6, v[%d:%d] offset:%d', 20+8*t, 23+8*t, 9216*t+4608)
    k('s_waitcnt lgkmcnt(0)')
    k('s_barrier')
    k('v_mul_u32_u24 v7, 1152, v1')
    k('v_lshlrev_b32 v16, 1, v2')
    k('v_add_u32 v7, v7, v16')
    k('s_mul_i32 s24, s20, %d', 64*NT)
    k('v_add_u32 v17, s24, v2')
    k('v_lshlrev_b32 v17, 12, v17')
    k('v_add_u32 v17, v17, v4')
    k('s_lshl_b32 s25, s21, 7')
    k('v_add_u32 v17, s25, v17')
    for t in range(NT):
        for half in range(2):
            for e in range(8):
                k('ds_read_u16 v%d, v7 offset:%d', 32+half*8+e, 9216*t+e*144+half*64)
        k('s_waitcnt lgkmcnt(0)')
        for i in range(8):
            k('v_lshl_or_b32 v%d, v%d, 16, v%d', 48+8*(t%2)+i, 33+2*i, 32+2*i)
        k('v_add_u32 v18, 0x%x, v17', 0x40000*t)
        k('v_add_u32 v19, 0x%x, v17', 0x40000*t+0x20000)
        b=48+8*(t%2)
        k('buffer_store_dwordx4 v[%d:%d], v18, s[12:15], 0 offen', b, b+3)
        k('buffer_store_dwordx4 v[%d:%d], v19, s[12:15], 0 offen', b+4, b+7)

def body_WT2(k, wg='s2', pfx='WT'):
    k('s_load_dwordx4 s[4:7], s[0:1], 80')
    k('s_load_dwordx2 s[28:29], s[0:1], 112')
    k('s_and_b32 s20, %s, 15', wg)
    k('s_lshr_b32 s21, %s, 4', wg)
    k('v_and_b32 v1, 63, v0')
    k('v_lshrrev_b32 v2, 6, v0')
    k('s_waitcnt lgkmcnt(0)')
    srd(k, 8, 4, 2048*513*2)
    srd(k, 12, 6, 2048*513*2)
    srd(k, 16, 28, 513*8192, WS_WT)
    k('s_lshl_b32 s22, s20, 7')
    k('v_lshl_add_u32 v3, v2, 5, s22')
    k('v_mul_u32_u24 v3, 513, v3')
    k('s_lshl_b32 s23, s21, 6')
    k('v_add_u32 v3, s23, v3')
    k('v_add_u32 v3, v3, v1')
    k('v_lshlrev_b32 v3, 1, v3')
    for b in range(1,8): k('v_add_u32 v%d, %d, v3', 3+b, 4104*b)
    for i in range(32):
        k('buffer_load_ushort v%d, v%d, s[8:11], 0 offen offset:%d', 16+i, 3+i//4, 1026*(i%4))
    for i in range(32):
        k('buffer_load_ushort v%d, v%d, s[12:15], 0 offen offset:%d', 48+i, 3+i//4, 1026*(i%4))
    k('v_mul_u32_u24 v12, 129, v1')
    k('v_lshl_add_u32 v12, v2, 5, v12')
    k('v_lshlrev_b32 v12, 2, v12')
    k('s_waitcnt vmcnt(0)')
    for i in range(32):
        k('v_lshl_or_b32 v%d, v%d, 16, v%d', 16+i, 48+i, 16+i)
        k('ds_write_b32 v12, v%d offset:%d', 16+i, 4*i)
    k('s_waitcnt lgkmcnt(0)')
    k('s_barrier')
    k('v_and_b32 v1, 31, v0')
    k('v_lshrrev_b32 v2, 5, v0')
    k('v_mul_u32_u24 v7, 129, v2')
    k('v_lshl_add_u32 v7, v1, 2, v7')
    k('v_lshlrev_b32 v7, 2, v7')
    for i in range(8):
        for j in range(4):
            k('ds_read_b32 v%d, v7 offset:%d', 16+4*i+j, 8*129*4*i+4*j)
    k('v_add_u32 v3, s23, v2')
    k('v_lshlrev_b32 v3, 13, v3')
    k('v_lshl_add_u32 v3, v1, 4, v3')
    k('s_lshl_b32 s24, s22, 2')
    k('s_waitcnt lgkmcnt(0)')
    for i in range(8):
        k('v_add_u32 v4, %d, v3', 8*8192*i)
        k('buffer_store_dwordx4 v[%d:%d], v4, s[16:19], s24 offen', 16+4*i, 19+4*i)
```

```python
import sys
from b2v3 import *
def merged(name, parts):
    k=Kern(name)
    base=0
    for i,(body,n,pfx) in enumerate(parts):
        k('s_cmp_lt_u32 s2, %d', base+n)
        k('s_cbranch_scc1 %s_part%d', name, i)
        base+=n
    k('s_endpgm')
    base=0
    for i,(body,n,pfx) in enumerate(parts):
        k.label('%s_part%d'%(name,i))
        k('s_sub_u32 s3, s2, %d', base)
        k('s_nop 4')
        body(k, 's3', pfx)
        k('s_waitcnt vmcnt(0) lgkmcnt(0)')
        k('s_endpgm')
        base+=n
    return k, base
hdr=[];ks=[]
for name,parts,lds in [
    ('l1_kernel',[(body_B1v4,128,'B1'),(body_TAB,2,'TAB'),(body_WT,288,'WT'),(body_T,512,'T')],51328),
    ('l2_kernel',[(body_B2v3,129,'B2'),(body_AF2,1024,'AF')],40960),
    ('l3_kernel',[(body_B3v2,256,'B3'),(body_EP,512,'EP')],9216)]:
    k,n=merged(name,parts)
    hdr.append('; @launch kernel=%s grid=(%d,1,1) block=(256,1,1) lds=%d'%(name,n,lds))
    ks.append(k)
emit_file(hdr, ks, sys.argv[1])
```

```python
from partB import *
def body_AF2(k, wg='s2', pfx='AF'):
    PT=0; PSTR=528; MP=12288; RED=16384; KD=28672; UZ=33280; UOFF=UZ+2560
    k('s_load_dwordx4 s[4:7], s[0:1], 8')
    k('s_load_dwordx4 s[8:11], s[0:1], 24')
    k('s_load_dwordx4 s[12:15], s[0:1], 40')
    k('s_load_dwordx2 s[16:17], s[0:1], 56')
    k('s_load_dwordx2 s[18:19], s[0:1], 112')
    k('v_lshrrev_b32 v2, 6, v0')
    k('s_waitcnt lgkmcnt(0)')
    for i,b in enumerate([4,6,8,10,12,14]):
        srd(k, 24+4*i, b, 262144)
    srd(k, 48, 16, 2048)
    srd(k, 52, 18, 4194304, WS_UT)
    srd(k, 60, 18, 4194304, WS_YT)
    srd(k, 68, 18, 4224, WS_TAB+86*1024)
    k('v_readfirstlane_b32 s64, v2')
    k('s_lshl_b32 s65, %s, 12', wg)
    k('v_lshlrev_b32 v3, 4, v0')
    k('buffer_load_dwordx4 v[100:103], v3, s[52:55], s65 offen')
    k('v_cmp_gt_u32 vcc, 128, v0')
    k('s_and_saveexec_b64 s[20:21], vcc')
    k('s_cbranch_execz %s_p0done', pfx)
    k('s_lshl_b32 s22, %s, 8', wg)
    k('v_lshlrev_b32 v1, 1, v0')
    k('v_add_u32 v1, s22, v1')
    for i in range(6):
        k('buffer_load_ushort v%d, v1, s[%d:%d], 0 offen', 2+i, 24+4*i, 27+4*i)
    k('s_lshl_b32 s23, %s, 1', wg)
    k('v_mov_b32 v8, s23')
    k('buffer_load_ushort v8, v8, s[48:51], 0 offen')
    k('s_waitcnt vmcnt(0)')
    for i in range(7):
        k('v_lshlrev_b32 v%d, 16, v%d', 2+i, 2+i)
    k('s_mov_b32 s56, 0x%x', LOG2E)
    k('s_mov_b32 s57, 0x%x', INV2PI)
    k('v_mul_f32 v8, s56, v8')
    k('v_exp_f32 v8, v8')
    k('v_cvt_pk_bf16_f32 v8, v8, v8')
    k('v_lshlrev_b32 v8, 16, v8')
    k('v_mul_f32 v2, v8, v2')
    k('v_mul_f32 v3, v8, v3')
    k('v_mul_f32 v4, v8, v4')
    k('v_mul_f32 v5, v8, v5')
    k('v_mul_f32 v10, v6, v4')
    k('v_fma_f32 v10, -v7, v5, v10')
    k('v_mul_f32 v11, v6, v5')
    k('v_fma_f32 v11, v7, v4, v11')
    k('v_mul_f32 v2, s56, v2')
    k('v_mul_f32 v3, s57, v3')
    k('v_lshlrev_b32 v12, 3, v0')
    k('ds_write_b64 v12, v[2:3] offset:%d', MP)
    k('v_mul_f32 v4, 0x42000000, v2')
    k('v_mul_f32 v5, 0x42000000, v3')
    k('v_exp_f32 v4, v4')
    k('v_fract_f32 v5, v5')
    k('v_cos_f32 v6, v5')
    k('v_sin_f32 v7, v5')
    k('v_mul_f32 v6, v4, v6')
    k('v_mul_f32 v7, v4, v7')
    k('v_lshlrev_b32 v12, 2, v0')
    def store_row(r):
        k('v_xor_b32 v13, 0x80000000, v11')
        k('v_cvt_pk_bf16_f32 v13, v10, v13')
        k('ds_write_b32 v12, v13 offset:%d', PT+PSTR*r)
    def mulz():
        k('v_mul_f32 v14, v11, v7')
        k('v_mul_f32 v15, v10, v7')
        k('v_fma_f32 v10, v10, v6, -v14')
        k('v_fma_f32 v11, v11, v6, v15')
    def sqz():
        k('v_mul_f32 v14, v7, v7')
        k('v_mul_f32 v15, v6, v7')
        k('v_fma_f32 v6, v6, v6, -v14')
        k('v_add_f32 v7, v15, v15')
    r=0
    for reg,nrows in enumerate([8,4,4,4]):
        for i in range(nrows):
            store_row(r); r+=1
            mulz()
        if reg<3: sqz()
    store_row(20)
    k.label('%s_p0done'%pfx)
    k('s_mov_b64 exec, s[20:21]')
    k('v_lshrrev_b32 v6, 2, v0')
    k('v_mul_u32_u24 v6, 80, v6')
    k('v_and_b32 v7, 3, v0')
    k('v_lshl_add_u32 v6, v7, 4, v6')
    for i in range(4): k('v_mov_b32 v%d, 0', 104+i)
    k('v_lshlrev_b32 v3, 4, v0')
    k('v_cmp_gt_u32 vcc, 160, v0')
    k('s_and_saveexec_b64 s[20:21], vcc')
    k('ds_write_b128 v3, v[104:107] offset:%d', UZ)
    k('s_mov_b64 exec, s[20:21]')
    k('s_waitcnt vmcnt(0)')
    k('ds_write_b128 v6, v[100:103] offset:%d', UOFF)
    k('s_waitcnt lgkmcnt(0)')
    k('s_barrier')
    k('v_and_b32 v5, 31, v0')
    k('v_bfe_u32 v6, v0, 5, 1')
    k('v_cvt_f32_u32 v1, v5')
    k('v_lshlrev_b32 v3, 5, v6')
    k('s_lshl_b32 s66, s64, 8')
    k('v_add_u32 v3, s66, v3')
    k('v_min_u32 v4, 20, v5')
    k('v_mul_u32_u24 v4, %d, v4', PSTR)
    k('v_lshl_add_u32 v4, v6, 4, v4')
    k('s_lshl_b32 s66, s64, 7')
    k('v_add_u32 v4, s66, v4')
    ACC=64
    def ld(ks):
        S=16+12*(ks%2)
        k('ds_read_b128 v[%d:%d], v3 offset:%d', S, S+3, MP+64*ks)
        k('ds_read_b128 v[%d:%d], v3 offset:%d', S+4, S+7, MP+64*ks+16)
        k('ds_read_b128 v[%d:%d], v4 offset:%d', S+8, S+11, PT+32*ks)
    ld(0); ld(1)
    for ks in range(4):
        S=16+12*(ks%2)
        k('s_waitcnt lgkmcnt(%d)', 3 if ks<3 else 0)
        for m in range(4):
            p=S+2*m
            k('v_mul_f32 v%d, v%d, v1', 48+m, p)
            k('v_mul_f32 v%d, v%d, v1', 52+m, p+1)
        for m in range(4):
            k('v_exp_f32 v%d, v%d', 48+m, 48+m)
            k('v_fract_f32 v%d, v%d', 52+m, 52+m)
        for m in range(4):
            k('v_cos_f32 v%d, v%d', 40+2*m, 52+m)
            k('v_sin_f32 v%d, v%d', 41+2*m, 52+m)
        for m in range(4):
            k('v_mul_f32 v%d, v%d, v%d', 40+2*m, 48+m, 40+2*m)
            k('v_mul_f32 v%d, v%d, v%d', 41+2*m, 48+m, 41+2*m)
        for reg in range(4):
            B=56+4*(reg%2)
            for m in range(4):
                k('v_cvt_pk_bf16_f32 v%d, v%d, v%d', B+m, 40+2*m, 41+2*m)
            if reg<3:
                for m in range(4):
                    e=40+2*m
                    k('v_pk_mul_f32 v[%d:%d], v[%d:%d], v[%d:%d] op_sel:[0,0] op_sel_hi:[1,0]', 48+2*m,49+2*m,e,e+1,e,e+1)
            a=ACC+16*reg
            k('v_mfma_f32_32x32x16_bf16 v[%d:%d], v[%d:%d], v[%d:%d], %s', a,a+15,S+8,S+11,B,B+3,'0' if ks==0 else 'v[%d:%d]'%(a,a+15))
            if reg<3:
                for m in range(4):
                    e=40+2*m
                    k('v_fma_f32 v%d, -v%d, v%d, v%d', e, e+1, e+1, 48+2*m)
                    k('v_add_f32 v%d, v%d, v%d', e+1, 49+2*m, 49+2*m)
        if ks+2<4: ld(ks+2)
    k('v_lshlrev_b32 v7, 2, v5')
    k('v_lshl_add_u32 v7, v6, 9, v7')
    k('s_mul_i32 s66, s64, 2688')
    k('v_add_u32 v7, s66, v7')
    for i in range(4):
        k('ds_write_b32 v7, v%d offset:%d', ACC+i, RED+128*i)
    k('v_cmp_eq_u32 vcc, 1, v6')
    for i in range(4):
        k('v_cndmask_b32 v%d, v%d, v%d, vcc', 16+i, ACC+16+4+i, ACC+32+4+i)
    for i in range(4):
        k('v_cndmask_b32 v%d, v%d, v%d, vcc', 20+i, ACC+48+8+i, ACC+8+i)
    for i in range(4):
        k('ds_write_b32 v7, v%d offset:%d', 16+i, RED+128*(8+i))
    k('ds_write_b32 v7, v20 offset:%d', RED+128*16)
    k('v_cmp_eq_u32 vcc, 0, v6')
    k('s_and_saveexec_b64 s[20:21], vcc')
    for i in range(1,4):
        k('ds_write_b32 v7, v%d offset:%d', 20+i, RED+128*(16+i))
    k('s_mov_b64 exec, s[20:21]')
    k('s_waitcnt lgkmcnt(0)')
    k('s_barrier')
    k('v_lshlrev_b32 v3, 2, v0')
    for kk in range(3):
        for w in range(4):
            k('ds_read_b32 v%d, v3 offset:%d', 16+4*kk+w, RED+1024*kk+2688*w)
    k('s_waitcnt lgkmcnt(0)')
    for kk in range(3):
        b=16+4*kk
        k('v_add_f32 v%d, v%d, v%d', b, b, b+1)
        k('v_add_f32 v%d, v%d, v%d', b+2, b+2, b+3)
        k('v_add_f32 v%d, v%d, v%d', b, b, b+2)
    k('v_cmp_eq_u32 vcc, 255, v0')
    k('v_cndmask_b32 v24, v24, 0, vcc')
    for kk in range(3):
        k('ds_write_b32 v3, v%d offset:%d', 16+4*kk, KD+1024*kk)
    k('v_lshlrev_b32 v4, 4, v0')
    k('buffer_load_dwordx4 v[112:115], v4, s[68:71], 0 offen')
    k('buffer_load_dwordx4 v[116:119], v4, s[68:71], 0 offen offset:16')
    k('s_waitcnt lgkmcnt(0)')
    k('s_barrier')
    k('s_waitcnt vmcnt(0)')
    for p in range(8):
        k('v_and_b32 v5, 0xffff, v%d', 8+p if False else 112+p)
        k('v_lshrrev_b32 v6, 16, v%d', 112+p)
        k('ds_read_b32 v%d, v5 offset:%d', 16+2*p, KD)
        k('ds_read_b32 v%d, v6 offset:%d', 17+2*p, KD)
    k('s_waitcnt lgkmcnt(0)')
    for p in range(8):
        k('v_cvt_pk_bf16_f32 v%d, v%d, v%d', 32+p, 16+2*p, 17+2*p)
    k('s_barrier')
    k('v_lshlrev_b32 v3, 4, v0')
    for q in range(8):
        W=32; T=64+4*q
        if q%2==0:
            if (q//2)%2==0: src=W+q//2
            else:
                for t in range(4): k('v_mov_b32 v%d, v%d', T+t, W+q//2+t)
                src=T
        else:
            for t in range(4): k('v_alignbit_b32 v%d, v%d, v%d, 16', T+t, W+(q+1)//2+t, W+(q-1)//2+t)
            src=T
        k('ds_write_b128 v3, v[%d:%d] offset:%d', src, src+3, 4160*q)
    for i in range(4): k('v_mov_b32 v%d, 0', 104+i)
    k('v_cmp_gt_u32 vcc, 4, v0')
    k('s_and_saveexec_b64 s[20:21], vcc')
    for q in range(8):
        k('ds_write_b128 v3, v[104:107] offset:%d', 4160*q+4096)
    k('s_mov_b64 exec, s[20:21]')
    k('v_and_b32 v5, 31, v0')
    k('v_bfe_u32 v6, v0, 5, 1')
    k('v_and_b32 v7, 7, v5')
    k('v_sub_u32 v7, 7, v7')
    k('v_mul_u32_u24 v7, 4160, v7')
    k('v_lshrrev_b32 v8, 3, v5')
    k('v_sub_u32 v8, v6, v8')
    k('v_lshl_add_u32 v7, v8, 4, v7')
    k('v_add_u32 v7, 48, v7')
    k('s_mul_i32 s66, s64, 512')
    k('v_subrev_u32 v7, s66, v7')
    k('v_mul_u32_u24 v8, 80, v5')
    k('v_lshl_add_u32 v8, v6, 4, v8')
    k('v_add_u32 v8, %d, v8', UOFF-80*31)
    k('s_mul_i32 s66, s64, 640')
    k('v_subrev_u32 v8, s66, v8')
    k('s_waitcnt lgkmcnt(0)')
    k('s_barrier')
    its=[(dl,kk) for dl in range(8) for kk in range(2)]
    def issue(i):
        dl,kk=its[i]; b=16+16*(i%3)
        c0=32*dl-16*kk; c1=32*(dl+32)-16*kk
        k('ds_read_b128 v[%d:%d], v7 offset:%d', b, b+3, 2*(2016-c0))
        k('ds_read_b128 v[%d:%d], v7 offset:%d', b+4, b+7, 2*(2016-c1))
        ob=80*(31-dl)+32*kk
        k('ds_read_b128 v[%d:%d], v8 offset:%d', b+8, b+11, ob)
        k('ds_read_b128 v[%d:%d], v8 offset:%d', b+12, b+15, ob+2560)
    issue(0); issue(1)
    n=len(its)
    for i in range(n):
        if i+2<n:
            issue(i+2); k('s_waitcnt lgkmcnt(8)')
        elif i+1<n: k('s_waitcnt lgkmcnt(4)')
        else: k('s_waitcnt lgkmcnt(0)')
        b=16+16*(i%3)
        c0='0' if i==0 else 'v[64:79]'; c1='0' if i==0 else 'v[80:95]'
        k('v_mfma_f32_32x32x16_bf16 v[64:79], v[%d:%d], v[%d:%d], %s', b,b+3,b+8,b+11,c0)
        k('v_mfma_f32_32x32x16_bf16 v[80:95], v[%d:%d], v[%d:%d], %s', b,b+3,b+12,b+15,c1)
        k('v_mfma_f32_32x32x16_bf16 v[80:95], v[%d:%d], v[%d:%d], v[80:95]', b+4,b+7,b+8,b+11)
    k('s_barrier')
    k('v_and_b32 v4, 63, v0')
    k('v_lshlrev_b32 v4, 4, v4')
    k('s_lshl_b32 s66, s64, 13')
    k('v_add_u32 v3, s66, v4')
    for r4 in range(8):
        k('ds_write_b128 v3, v[%d:%d] offset:%d', 64+4*r4, 67+4*r4, 1024*r4)
    k('s_waitcnt lgkmcnt(0)')
    k('s_barrier')
    k('s_lshl_b32 s66, s64, 11')
    k('v_add_u32 v3, s66, v4')
    for j in range(2):
        for w in range(4):
            k('ds_read_b128 v[%d:%d], v3 offset:%d', 16+16*j+4*w, 19+16*j+4*w, 8192*w+1024*j)
    k('s_waitcnt lgkmcnt(0)')
    for j in range(2):
        for t in range(4):
            b=16+16*j+t
            k('v_add_f32 v%d, v%d, v%d', b, b, b+4)
            k('v_add_f32 v%d, v%d, v%d', b+8, b+8, b+12)
            k('v_add_f32 v%d, v%d, v%d', b, b, b+8)
        k('v_cvt_pk_bf16_f32 v%d, v%d, v%d', 48+2*j, 16+16*j, 17+16*j)
        k('v_cvt_pk_bf16_f32 v%d, v%d, v%d', 49+2*j, 18+16*j, 19+16*j)
    k('v_lshlrev_b32 v9, 6, v5')
    k('v_lshl_add_u32 v9, v6, 3, v9')
    k('s_lshr_b32 s66, s64, 1')
    k('s_lshl_b32 s66, s66, 11')
    k('s_and_b32 s67, s64, 1')
    k('s_lshl_b32 s67, s67, 5')
    k('s_add_u32 s66, s66, s67')
    k('s_add_u32 s66, s66, s65')
    k('buffer_store_dwordx2 v[48:49], v9, s[60:63], s66 offen')
    k('buffer_store_dwordx2 v[50:51], v9, s[60:63], s66 offen offset:16')
```

```python
from af2 import *
NG=86
def tab_store(k, g, src):
    k('buffer_store_dwordx4 v[%d:%d], v3, s[8:11], 0 offen offset:0' % (src,src+3) if False else 'v_add_u32 v15, %d, v3' % (g*1024))
    k('buffer_store_dwordx4 v[%d:%d], v15, s[8:11], 0 offen', src, src+3)

def body_TAB(k, wg='s2', pfx='TAB'):
    k('s_load_dwordx2 s[6:7], s[0:1], 112')
    k('v_and_b32 v1, 31, v0')
    k('v_bfe_u32 v2, v0, 5, 1')
    k('v_lshrrev_b32 v4, 6, v0')
    k('v_and_b32 v3, 63, v0')
    k('v_lshlrev_b32 v3, 4, v3')
    k('v_add_u32 v12, 32, v1')
    k('s_waitcnt lgkmcnt(0)')
    srd(k, 8, 6, NG*1024+4224, WS_TAB)
    k('v_readfirstlane_b32 s22, v4')
    k('s_lshl_b32 s23, %s, 2', wg)
    k('s_add_u32 s22, s22, s23')
    jobs=[[] for _ in range(8)]
    def J(fn): jobs[min(range(8), key=lambda i: sum(c for c,_ in jobs[i]))].append(fn)
    def op_job(g, vA, N, elems):
        def e():
            const_operand(k, 16, vA, 2, N, elems, 8); tab_store(k, g, 16)
        J((8,e))
    for kk in range(4):
        el_re=[]; el_im=[]
        for j in range(8):
            c0=8*kk+(j>>1)
            if j&1==0: el_re.append((c0,4,'cos',False)); el_im.append((c0,4,'sin',True))
            else: el_re.append((c0,4,'sin',False)); el_im.append((c0,4,'cos',False))
        op_job(kk,1,32,el_re); op_job(4+kk,1,32,el_im)
    def tw_job(gc, gs, vA, c0s, N, neg):
        def e():
            for t,c0 in enumerate(c0s):
                angle(k, 8, vA, 2, c0, 4, N, 10)
                trig(k, 16+t, 8, 'cos'); trig(k, 20+t, 8, 'sin', neg)
            tab_store(k, gc, 16); tab_store(k, gs, 20)
        J((6,e))
    for mt in range(2):
        for g4 in range(4):
            tw_job(8+4*mt+g4, 16+4*mt+g4, 1, [32*mt+8*g4+i for i in range(4)], 2048, True)
    for mt in range(2):
        for ks in range(4):
            pk=perm_k(ks); vA=1 if mt==0 else 12
            gb=24+3*(4*mt+ks)
            op_job(gb,vA,64,[(c0,c1,'cos',False) for c0,c1 in pk])
            op_job(gb+1,vA,64,[(c0,c1,'sin',True) for c0,c1 in pk])
            op_job(gb+2,vA,64,[(c0,c1,'sin',False) for c0,c1 in pk])
    for nt in range(2):
        for g4 in range(4):
            tw_job(48+4*nt+g4, 56+4*nt+g4, 1 if nt==0 else 12, [8*g4+i for i in range(4)], 2048, False)
    for ks in range(2):
        pk=perm_k(ks)
        op_job(64+3*ks,1,32,[(c0,c1,'cos',False) for c0,c1 in pk])
        op_job(65+3*ks,1,32,[(c0,c1,'sin',False) for c0,c1 in pk])
        op_job(66+3*ks,1,32,[(c0,c1,'sin',True) for c0,c1 in pk])
    for kk in range(2):
        el_re=[]; el_im=[]
        for j in range(8):
            c0=8*kk+(j>>1)
            if j&1==0: el_re.append((c0,4,'cos',False)); el_im.append((c0,4,'sin',False))
            else: el_re.append((c0,4,'sin',True)); el_im.append((c0,4,'cos',False))
        op_job(70+kk,1,32,el_re); op_job(72+kk,1,32,el_im)
    for ks in range(2):
        pk=perm_k(ks)
        op_job(74+ks,1,32,[(c0,c1,'cos',False) for c0,c1 in pk])
        op_job(76+ks,1,32,[(c0,c1,'sin',True) for c0,c1 in pk])
    for g4 in range(4):
        tw_job(78+g4, 82+g4, 1, [8*g4+i for i in range(4)], 1024, False)
    k('s_lshl_b32 s23, s22, 6')
    k('v_and_b32 v16, 63, v0')
    k('v_add_u32 v16, s23, v16')
    for j in range(5):
        k('v_add_u32 v17, %d, v16', 512*j)
        k('v_sub_u32 v18, 2047, v17')
        k('v_cvt_f32_i32 v19, v18')
        k('v_cvt_pk_bf16_f32 v19, v19, v19')
        k('v_and_b32 v19, 0xffff, v19')
        k('v_subrev_u32 v19, 17024, v19')
        k('v_cmp_gt_i32 vcc, 256, v18')
        k('v_cndmask_b32 v19, v19, v18, vcc')
        k('v_mov_b32 v20, 767')
        k('v_cmp_gt_i32 vcc, 0, v18')
        k('v_cndmask_b32 v19, v19, v20, vcc')
        k('v_lshlrev_b32 v19, 2, v19')
        k('v_lshlrev_b32 v17, 1, v17')
        k('v_add_u32 v17, %d, v17', NG*1024)
        k('buffer_store_short v19, v17, s[8:11], 0 offen')
    for w in range(8):
        k('s_cmp_lg_u32 s22, %d', w)
        k('s_cbranch_scc1 %s_n%d', pfx, w)
        for c,e in jobs[w]:
            e()
            k('s_nop 1')
        k('s_branch %s_end', pfx)
        k.label('%s_n%d'%(pfx,w))
    k.label('%s_end'%pfx)

def body_B2v2(k, wg='s2', pfx='B2'):
    k('s_load_dwordx2 s[6:7], s[0:1], 112')
    k('v_and_b32 v1, 31, v0')
    k('v_bfe_u32 v2, v0, 5, 1')
    k('v_lshrrev_b32 v3, 6, v0')
    k('s_waitcnt lgkmcnt(0)')
    srd(k, 8, 6, 513*8192, WS_XC)
    srd(k, 12, 6, 513*8192, WS_WT)
    srd(k, 16, 6, 4194304, WS_ZC)
    srd(k, 32, 6, 8192, WS_ZN)
    srd(k, 36, 6, NG*1024, WS_TAB)
    k('v_readfirstlane_b32 s22, v3')
    k('s_and_b32 s20, %s, 31', wg)
    k('s_lshr_b32 s21, %s, 5', wg)
    k('s_lshl_b32 s23, s21, 2')
    k('s_add_u32 s23, s23, s22')
    k('s_lshl_b32 s23, s23, 5')
    k('s_add_u32 s23, s23, s20')
    k('s_cmp_gt_u32 s23, 512')
    k('s_cbranch_scc1 %s_skip', pfx)
    k('s_lshl_b32 s24, s23, 13')
    k('s_mov_b32 s25, 0x%x', f2u(2.0/(2048*1024)))
    k('s_and_b32 s26, s23, 511')
    k('s_cmp_eq_u32 s26, 0')
    k('s_cselect_b32 s25, 0x%x, s25', f2u(1.0/(2048*1024)))
    k('v_and_b32 v13, 63, v0')
    k('v_lshlrev_b32 v13, 4, v13')
    def tload(dst, g):
        k('s_mov_b32 s27, %d', (g//4)*4096)
        k('buffer_load_dwordx4 v[%d:%d], v13, s[36:39], s27 offen offset:%d', dst, dst+3, (g%4)*1024)
    k('v_lshlrev_b32 v4, 7, v1')
    k('v_lshl_add_u32 v4, v2, 4, v4')
    k('v_add_u32 v5, 4096, v4')
    for kk in range(4):
        k('buffer_load_dwordx4 v[%d:%d], v4, s[8:11], s24 offen offset:%d', 16+4*kk, 19+4*kk, 32*kk)
    for kk in range(4):
        k('buffer_load_dwordx4 v[%d:%d], v5, s[8:11], s24 offen offset:%d', 32+4*kk, 35+4*kk, 32*kk)
    for g in range(8): tload(48+4*g, g)
    for g in range(16): tload(144+4*g, 8+g)
    k('s_waitcnt vmcnt(16)')
    for mt in range(2):
        for kk in range(4):
            c_re='0' if kk==0 else 'v[%d:%d]'%(80+16*mt,95+16*mt)
            c_im='0' if kk==0 else 'v[%d:%d]'%(112+16*mt,127+16*mt)
            a=16+16*mt+4*kk
            k('v_mfma_f32_32x32x16_bf16 v[%d:%d], v[%d:%d], v[%d:%d], %s', 80+16*mt,95+16*mt,a,a+3,48+4*kk,51+4*kk,c_re)
            k('v_mfma_f32_32x32x16_bf16 v[%d:%d], v[%d:%d], v[%d:%d], %s', 112+16*mt,127+16*mt,a,a+3,64+4*kk,67+4*kk,c_im)
    k('v_lshlrev_b32 v6, 2, v1')
    k('v_lshl_add_u32 v6, v2, 9, v6')
    k('v_add_u32 v7, 4096, v6')
    for mt in range(2):
        for r in range(16):
            k('buffer_load_dword v%d, v%d, s[12:15], s24 offen offset:%d', 208+16*mt+r, 6+mt, 128*(8*(r>>2)+(r&3)))
    k('s_waitcnt vmcnt(32)')
    for e in range(32):
        cmul_tw(k, 80+e, 112+e, 144+e, 176+e, 11)
    for p in range(16):
        k('v_cvt_pk_bf16_f32 v%d, v%d, v%d', 16+p, 80+2*p, 81+2*p)
        k('v_cvt_pk_bf16_f32 v%d, v%d, v%d', 32+p, 112+2*p, 113+2*p)
    def greg(i):
        return 48+4*i if i<8 else 144+4*(i-8)
    for i in range(24): tload(greg(i), 24+i)
    for mt2 in range(2):
        for ks in range(4):
            i=3*(4*mt2+ks)
            k('s_waitcnt vmcnt(%d)', 24-(i+3))
            Gr=greg(i); Gi=greg(i+1); Gn=greg(i+2)
            R='v[%d:%d]'%(80+16*mt2,95+16*mt2); I='v[%d:%d]'%(112+16*mt2,127+16*mt2)
            pr=16+4*ks; pi=32+4*ks
            k('v_mfma_f32_32x32x16_bf16 %s, v[%d:%d], v[%d:%d], %s', R, Gr,Gr+3, pr,pr+3, '0' if ks==0 else R)
            k('v_mfma_f32_32x32x16_bf16 %s, v[%d:%d], v[%d:%d], %s', I, Gi,Gi+3, pr,pr+3, '0' if ks==0 else I)
            k('v_mfma_f32_32x32x16_bf16 %s, v[%d:%d], v[%d:%d], %s', R, Gn,Gn+3, pi,pi+3, R)
            k('v_mfma_f32_32x32x16_bf16 %s, v[%d:%d], v[%d:%d], %s', I, Gr,Gr+3, pi,pi+3, I)
    for e in range(32):
        k('v_lshlrev_b32 v9, 16, v%d', 208+e)
        k('v_and_b32 v10, 0xffff0000, v%d', 208+e)
        k('v_mul_f32 v9, s25, v9')
        k('v_mul_f32 v10, s25, v10')
        cmul_tw(k, 80+e, 112+e, 9, 10, 11)
    for g in range(8): tload(208+4*g, 48+g)
    for p in range(16):
        k('v_cvt_pk_bf16_f32 v%d, v%d, v%d', 16+p, 80+2*p, 81+2*p)
        k('v_cvt_pk_bf16_f32 v%d, v%d, v%d', 32+p, 112+2*p, 113+2*p)
    for nt in range(2):
        for ks in range(4):
            i=3*(4*nt+ks)
            C=greg(i); Sn=greg(i+1); S=greg(i+2)
            R='v[%d:%d]'%(80+16*nt,95+16*nt); I='v[%d:%d]'%(112+16*nt,127+16*nt)
            dr=16+4*ks; di=32+4*ks
            k('v_mfma_f32_32x32x16_bf16 %s, v[%d:%d], v[%d:%d], %s', R, dr,dr+3, C,C+3, '0' if ks==0 else R)
            k('v_mfma_f32_32x32x16_bf16 %s, v[%d:%d], v[%d:%d], %s', I, dr,dr+3, S,S+3, '0' if ks==0 else I)
            k('v_mfma_f32_32x32x16_bf16 %s, v[%d:%d], v[%d:%d], %s', R, di,di+3, Sn,Sn+3, R)
            k('v_mfma_f32_32x32x16_bf16 %s, v[%d:%d], v[%d:%d], %s', I, di,di+3, C,C+3, I)
    k('s_nop 7')
    for g in range(8): tload(144+4*g, 56+g)
    for g in range(6): tload(176+4*g, 64+g)
    k('s_waitcnt vmcnt(6)')
    for e in range(32):
        cmul_tw(k, 80+e, 112+e, 208+e, 144+e, 11)
    for p in range(16):
        k('v_cvt_pk_bf16_f32 v%d, v%d, v%d', 16+p, 80+2*p, 81+2*p)
        k('v_cvt_pk_bf16_f32 v%d, v%d, v%d', 32+p, 112+2*p, 113+2*p)
    k('s_waitcnt vmcnt(0)')
    for nt in range(2):
        R='v[%d:%d]'%(80+16*nt,95+16*nt); I='v[%d:%d]'%(112+16*nt,127+16*nt)
        for ks in range(2):
            pr=16+8*nt+4*ks; pi=32+8*nt+4*ks; c=176+12*ks
            k('v_mfma_f32_32x32x16_bf16 %s, v[%d:%d], v[%d:%d], %s', R, c,c+3, pr,pr+3, '0' if ks==0 else R)
            k('v_mfma_f32_32x32x16_bf16 %s, v[%d:%d], v[%d:%d], %s', I, c+4,c+7, pr,pr+3, '0' if ks==0 else I)
            k('v_mfma_f32_32x32x16_bf16 %s, v[%d:%d], v[%d:%d], %s', R, c+8,c+11, pi,pi+3, R)
            k('v_mfma_f32_32x32x16_bf16 %s, v[%d:%d], v[%d:%d], %s', I, c,c+3, pi,pi+3, I)
    k('s_cmp_eq_u32 s23, 512')
    k('s_cbranch_scc1 %s_nyq', pfx)
    k('v_lshl_add_u32 v4, v2, 8, v1')
    k('v_lshlrev_b32 v4, 4, v4')
    k('s_lshl_b32 s26, s22, 2')
    k('v_add_u32 v4, s26, v4')
    for nt in range(2):
        for r in range(16):
            k('v_cvt_pk_bf16_f32 v%d, v%d, v%d', 16+16*nt+r, 80+16*nt+r, 112+16*nt+r)
    for nt in range(2):
        for r in range(16):
            s1=8*(r>>2)+(r&3)
            k('ds_write_b32 v4, v%d offset:%d', 16+16*nt+r, 16*(64*s1+32*nt))
    k('s_branch %s_skip', pfx)
    k.label('%s_nyq'%pfx)
    k('v_lshl_add_u32 v4, v2, 8, v1')
    k('v_lshlrev_b32 v4, 2, v4')
    k('v_add_u32 v5, 4096, v4')
    for nt in range(2):
        for r in range(16):
            s1=8*(r>>2)+(r&3)
            off=4*(64*s1+32*nt)
            if off<4096: k('buffer_store_dword v%d, v4, s[32:35], 0 offen offset:%d', 80+16*nt+r, off)
            else: k('buffer_store_dword v%d, v5, s[32:35], 0 offen offset:%d', 80+16*nt+r, off-4096)
    k.label('%s_skip'%pfx)
    k('s_waitcnt lgkmcnt(0)')
    k('s_barrier')
    k('s_cmp_eq_u32 %s, 128', wg)
    k('s_cbranch_scc1 %s_done', pfx)
    k('s_lshl_b32 s26, s20, 6')
    k('s_lshl_b32 s27, s21, 4')
    k('s_add_u32 s26, s26, s27')
    k('v_lshlrev_b32 v7, 4, v0')
    k('v_lshlrev_b32 v8, 11, v0')
    for i in range(8):
        k('ds_read_b128 v[%d:%d], v7 offset:%d', 16+4*i, 19+4*i, 4096*i)
    k('s_waitcnt lgkmcnt(0)')
    for i in range(8):
        k('v_add_u32 v9, %d, v8', 2048*256*i)
        k('buffer_store_dwordx4 v[%d:%d], v9, s[16:19], s26 offen', 16+4*i, 19+4*i)
    k.label('%s_done'%pfx)
```

```python
from b2v3 import *
def body_B3v3(k, wg='s2', pfx='B3'):
    k('s_load_dwordx2 s[6:7], s[0:1], 112')
    k('s_load_dwordx2 s[30:31], s[0:1], 96')
    k('v_and_b32 v1, 31, v0')
    k('v_bfe_u32 v2, v0, 5, 1')
    k('v_lshrrev_b32 v3, 6, v0')
    k('s_waitcnt lgkmcnt(0)')
    srd(k, 8, 6, 4194304, WS_ZC)
    srd(k, 12, 6, 8192, WS_ZN)
    srd(k, 36, 30, 8388608)
    srd(k, 40, 6, NG*1024, WS_TAB)
    k('v_readfirstlane_b32 s22, v3')
    k('v_lshlrev_b32 v4, 6, v1')
    k('v_lshl_add_u32 v4, v2, 4, v4')
    k('s_lshl_b32 s23, %s, 2', wg)
    k('s_add_u32 s23, s23, s22')
    k('v_mov_b32 v9, 0')
    k('s_lshl_b32 s24, s23, 11')
    k('s_lshl_b32 s25, s23, 2')
    k('s_lshl_b32 s26, s23, 12')
    k('buffer_load_dwordx4 v[80:83], v4, s[8:11], s24 offen')
    k('buffer_load_dwordx4 v[84:87], v4, s[8:11], s24 offen offset:32')
    k('buffer_load_dword v10, v9, s[12:15], s25 offen')
    k('v_and_b32 v13, 63, v0')
    k('v_lshlrev_b32 v13, 4, v13')
    for g in range(16):
        gg=70+g
        k('s_mov_b32 s27, %d', (gg//4)*4096)
        k('buffer_load_dwordx4 v[%d:%d], v13, s[40:43], s27 offen offset:%d', 16+4*g, 19+4*g, (gg%4)*1024)
    k('v_lshlrev_b32 v5, 31, v1')
    k('v_lshlrev_b32 v6, 8, v2')
    k('v_lshl_add_u32 v6, v1, 1, v6')
    k('v_add_u32 v6, 2048, v6')
    k('s_waitcnt vmcnt(12)')
    k('v_mfma_f32_32x32x16_bf16 v[88:103], v[80:83], v[16:19], 0')
    k('v_mfma_f32_32x32x16_bf16 v[104:119], v[80:83], v[24:27], 0')
    k('v_mfma_f32_32x32x16_bf16 v[88:103], v[84:87], v[20:23], v[88:103]')
    k('v_mfma_f32_32x32x16_bf16 v[104:119], v[84:87], v[28:31], v[104:119]')
    k('s_waitcnt vmcnt(0)')
    for e in range(16):
        cmul_tw(k, 88+e, 104+e, 48+e, 64+e, 8)
    for p in range(8):
        k('v_cvt_pk_bf16_f32 v%d, v%d, v%d', 80+p, 88+2*p, 89+2*p)
        k('v_cvt_pk_bf16_f32 v%d, v%d, v%d', 120+p, 104+2*p, 105+2*p)
    k('v_xor_b32 v7, v10, v5')
    for e in range(16): k('v_mov_b32 v%d, v7', 88+e)
    k('v_mfma_f32_32x32x16_bf16 v[88:103], v[32:35], v[80:83], v[88:103]')
    k('v_mfma_f32_32x32x16_bf16 v[88:103], v[36:39], v[84:87], v[88:103]')
    k('v_mfma_f32_32x32x16_bf16 v[88:103], v[40:43], v[120:123], v[88:103]')
    k('v_mfma_f32_32x32x16_bf16 v[88:103], v[44:47], v[124:127], v[88:103]')
    for p in range(8):
        k('v_cvt_pk_bf16_f32 v%d, v%d, v%d', 104+p, 88+2*p, 89+2*p)
    for p in range(8):
        r0=2*p; d1=8*(r0>>2)+(r0&3)
        k('buffer_store_short v%d, v6, s[36:39], s26 offen offset:%d', 104+p, 64*d1)
        k('buffer_store_short_d16_hi v%d, v6, s[36:39], s26 offen offset:%d', 104+p, 64*(d1+1))
```

```python
import sys
from b3v3 import *
def merged(name, parts):
    k=Kern(name)
    base=0
    for i,(body,n,pfx) in enumerate(parts):
        k('s_cmp_lt_u32 s2, %d', base+n)
        k('s_cbranch_scc1 %s_part%d', name, i)
        base+=n
    k('s_endpgm')
    base=0
    for i,(body,n,pfx) in enumerate(parts):
        k.label('%s_part%d'%(name,i))
        k('s_sub_u32 s3, s2, %d', base)
        k('s_nop 4')
        body(k, 's3', pfx)
        k('s_waitcnt vmcnt(0) lgkmcnt(0)')
        k('s_endpgm')
        base+=n
    return k, base
hdr=[];ks=[]
for name,parts,lds in [
    ('l1_kernel',[(body_B1v4,128,'B1'),(body_TAB,2,'TAB'),(body_WT,288,'WT'),(body_T,512,'T')],51328),
    ('l2_kernel',[(body_B2v3,129,'B2'),(body_AF2,1024,'AF')],40960),
    ('l3_kernel',[(body_B3v3,512,'B3'),(body_EP,512,'EP')],9216)]:
    k,n=merged(name,parts)
    hdr.append('; @launch kernel=%s grid=(%d,1,1) block=(256,1,1) lds=%d'%(name,n,lds))
    ks.append(k)
emit_file(hdr, ks, sys.argv[1])
```
